```python
import torch

def _softmax(x, axis=-1):
    return torch.softmax(x, dim=axis)
def _gelu(x):
    return torch.nn.functional.gelu(x, approximate="tanh")
def _silu(x):
    return torch.nn.functional.silu(x)
def _sigmoid(x):
    return torch.sigmoid(x)
def _layernorm(x, axis=-1, eps=1e-5):
    m = x.mean(dim=axis, keepdim=True)
    v = x.var(dim=axis, keepdim=True, unbiased=False)
    return (x - m) / torch.sqrt(v + eps)
def _scatter_add(tgt, idx, src, axis=0):
    return tgt.clone().index_add_(axis, idx, src)
def _segment_sum(src, seg, n):
    out = torch.zeros((n,) + src.shape[1:], dtype=src.dtype)
    return out.index_add_(0, seg, src)
def _pad(x, pw):
    flat = tuple(v for pair in reversed(pw) for v in pair)
    return torch.nn.functional.pad(x, flat)

kernel_name = 'recurrent_scan__sliding_block_cached__mixer_channel_mlp__decode'

def setup_inputs():

    _w = (lambda a: (lambda t: t.to(torch.bfloat16) if t.is_floating_point() else t)(torch.as_tensor(a)))
    def _A_setup():
        B, Sq, D = 1, 1, 512
        Hq, Hkv, Sk, Dh = 32, 32, 32768, 128
        assert Hq % Hkv == 0, (Hq, Hkv)
        return {
            "x": _w((lambda *s: torch.randn(*s, dtype=torch.bfloat16) * 0.1)(B, Sq, D)),
            "k_cache": _w((lambda *s: torch.randn(*s, dtype=torch.bfloat16) * 0.8)(B, Hkv, Sk, Dh)),
            "v_cache": _w((lambda *s: torch.randn(*s, dtype=torch.bfloat16) * 3.2)(B, Hkv, Sk, Dh)),
            "wq": _w((lambda *s: torch.randn(*s, dtype=torch.bfloat16) * 0.8)(D, Hq * Dh) * (D ** -0.5)),
            "wo": _w((lambda *s: torch.randn(*s, dtype=torch.bfloat16) * 3.2)(Hq * Dh, D) * ((Hq * Dh) ** -0.5)),
        }
    _A_in = _A_setup()

    def _B_setup():
        B, S, D, F = 1, 1, 512, 1376
        return {
            "x": _w((lambda *s: torch.randn(*s, dtype=torch.bfloat16) * 0.1)(B, S, D)),
            "w1": _w((lambda *s: torch.randn(*s, dtype=torch.bfloat16) * 3.2)(D, F) * (D ** -0.5)),
            "b1": _w((lambda *s: torch.randn(*s, dtype=torch.bfloat16) * 3.2)(F)),
            "w2": _w((lambda *s: torch.randn(*s, dtype=torch.bfloat16) * 3.2)(F, D) * (F ** -0.5)),
            "b2": _w((lambda *s: torch.randn(*s, dtype=torch.bfloat16) * 3.2)(D)),
        }
    _B_in = _B_setup()

    return {
        "A_x": _A_in["x"],
        "A_k_cache": _A_in["k_cache"],
        "A_v_cache": _A_in["v_cache"],
        "A_wq": _A_in["wq"],
        "A_wo": _A_in["wo"],
        "B_x": _B_in["x"],
        "B_w1": _B_in["w1"],
        "B_b1": _B_in["b1"],
        "B_w2": _B_in["w2"],
        "B_b2": _B_in["b2"],
    }

def reference(A_x, A_k_cache, A_v_cache, A_wq, A_wo, B_x, B_w1, B_b1, B_w2, B_b2):
    def _A_ref(x, k_cache, v_cache, wq, wo):
        B, Sq, D = x.shape
        Hq, Dh = 32, 128
        Hkv, Sk = k_cache.shape[1], k_cache.shape[2]
        W = min(4096, max(256, Sk // 4))
        rep = Hq // Hkv
        q = (lambda x, *d: x.permute(*d))((x @ wq).reshape(B, Sq, Hq, Dh), 0, 2, 1, 3)
        k = (lambda x, n, axis: torch.repeat_interleave(x, n, dim=axis))(k_cache[:, :, Sk - W:, :], rep, axis=1)
        v = (lambda x, n, axis: torch.repeat_interleave(x, n, dim=axis))(v_cache[:, :, Sk - W:, :], rep, axis=1)
        scores = torch.einsum("bhqd,bhkd->bhqk", q, k) * (Dh ** -0.5)
        p = _softmax(scores, axis=-1)
        o = torch.einsum("bhqk,bhkd->bhqd", p, v)
        return (lambda x, *d: x.permute(*d))(o, 0, 2, 1, 3).reshape(B, Sq, Hq * Dh) @ wo

    def _B_ref(x, w1, b1, w2, b2):
        y = _layernorm(x, axis=-1)
        h = _gelu(torch.einsum("bsd,df->bsf", y, w1) + b1)
        return torch.einsum("bsf,fd->bsd", h, w2) + b2

    x = A_x
    xn = _layernorm(x, axis=-1)
    s = _A_ref(xn, A_k_cache, A_v_cache, A_wq, A_wo)
    g = _silu(_B_ref(xn, B_w1, B_b1, B_w2, B_b2))
    return x + s * g
```

```python
import re

TRANS = ('v_exp_f32', 'v_log_f32', 'v_rcp_f32', 'v_rsq_f32', 'v_sqrt_f32', 'v_sin_f32', 'v_cos_f32')
_REG = re.compile(r'\b([vsa])(\d+)\b|\b([vsa])\[(\d+):(\d+)\]|\b(vcc|exec|m0|scc)\b')


def regs_of(tok):
    out = set()
    for m in _REG.finditer(tok):
        if m.group(1):
            out.add((m.group(1), int(m.group(2))))
        elif m.group(3):
            for i in range(int(m.group(4)), int(m.group(5)) + 1):
                out.add((m.group(3), i))
        else:
            out.add((m.group(6), 0))
    return out


def split_ops(s):
    ops, depth, cur = [], 0, ''
    for ch in s:
        if ch in '[(':
            depth += 1
        if ch in '])':
            depth -= 1
        if ch == ',' and depth == 0:
            ops.append(cur.strip()); cur = ''
        else:
            cur += ch
    if cur.strip():
        ops.append(cur.strip())
    return ops


class Ins:
    def __init__(self, text):
        self.text = text
        t = text.strip()
        parts = t.split(None, 1)
        self.op = parts[0]
        rest = parts[1] if len(parts) > 1 else ''
        ops = split_ops(rest)
        self.mods = ''
        if ops:
            last = ops[-1]
            m = re.match(r'^(\S+(?:\[[^\]]*\])?)\s+(.*)$', last)
            if m and not last.startswith(('vmcnt', 'lgkmcnt', 'hwreg')):
                ops[-1] = m.group(1); self.mods = m.group(2)
        self.ops = ops
        op = self.op
        self.valu = op.startswith('v_')
        self.salu = op.startswith('s_')
        self.vmem = op.startswith(('global_', 'buffer_', 'flat_'))
        self.ds = op.startswith('ds_')
        self.mfma = op.startswith('v_mfma')
        self.dpp = '_dpp' in op or 'quad_perm' in self.mods or 'row_' in self.mods
        self.perml = op.startswith('v_permlane')
        self.trans = op.replace('_e32', '').replace('_e64', '') in TRANS
        self.dot = op.startswith('v_dot')
        self.rdlane = op.startswith(('v_readlane', 'v_readfirstlane'))
        R = [regs_of(o) for o in ops]
        self.w = set(); self.r = set(); self.srcc = set(); self.sdata = set()
        if self.valu:
            if self.perml and 'swap' in op:
                self.w = R[0] | R[1]; self.r = R[0] | R[1]
            else:
                self.w = R[0]
                for x in R[1:]:
                    self.r |= x
                if op.startswith(('v_fmac', 'v_dot2c', 'v_pk_fmac', 'v_writelane')):
                    self.r |= R[0]; self.srcc = set(R[0])
                if op.startswith('v_dot2_') and len(R) == 4:
                    self.srcc = set(R[3]) - (R[1] | R[2])
                if op.startswith('v_dot2c'):
                    self.srcc = set(R[0]) - (R[1] | R[2])
                if self.mfma:
                    self.srcc = set(R[3])
                if op.startswith('v_cndmask') and len(ops) == 3:
                    self.r.add(('vcc', 0))
                if '_dpp' in op and 'bound_ctrl' not in self.mods:
                    pass
        elif self.vmem:
            if '_load' in op or ('atomic' in op and 'sc0' in self.mods):
                if ' lds' in (' ' + self.mods) or '_lds_' in op:
                    for x in R:
                        self.r |= x
                else:
                    self.w = R[0]
                    for x in R[1:]:
                        self.r |= x
            else:
                for x in R:
                    self.r |= x
                if 'x4' in op or 'x3' in op:
                    self.sdata = R[1] if op.startswith('global_') else R[0]
        elif self.ds:
            if op.startswith(('ds_read', 'ds_swizzle', 'ds_bpermute', 'ds_permute')) or '_rtn' in op:
                self.w = R[0]
                for x in R[1:]:
                    self.r |= x
            else:
                for x in R:
                    self.r |= x
        elif self.salu:
            if op.startswith(('s_cmp', 's_cbranch', 's_branch', 's_waitcnt', 's_nop', 's_barrier', 's_sleep', 's_endpgm', 's_setprio', 's_bitcmp', 's_setpc')):
                for x in R:
                    self.r |= x
            elif R:
                self.w = R[0]
                for x in R[1:]:
                    self.r |= x
                if 'saveexec' in op:
                    self.w |= {('exec', 0)}

    def states(self):
        if self.op == 's_nop':
            return int(self.ops[0], 0) + 1
        return 1


def mfma_passes(op):
    if '32x32x16' in op or '32x32x8' in op:
        return 8
    if '16x16x32' in op or '16x16x16' in op:
        return 4
    if '4x4x4' in op:
        return 2
    raise ValueError(op)


def need(p, c):
    n = 0
    vw = {x for x in p.w if x[0] in 'va'}
    sw = {x for x in p.w if x[0] in ('s', 'vcc')}
    if p.valu:
        if vw & c.r:
            if c.valu and c.dpp:
                n = max(n, 2)
            if c.perml:
                n = max(n, 2)
            if c.rdlane:
                n = max(n, 1)
            if c.mfma and not p.mfma:
                n = max(n, 2)
            if p.trans and c.valu and not c.trans:
                n = max(n, 1)
            if p.trans and (c.vmem or c.ds):
                n = max(n, 1)
        if p.dot:
            if c.op == p.op:
                if vw & (c.r - c.srcc):
                    n = max(n, 3)
            elif vw & (c.r | c.w):
                n = max(n, 3)
        if p.mfma:
            ps = mfma_passes(p.op)
            tbl_rw = {2: 5, 4: 8, 8: 12, 16: 20}[ps]
            if c.mfma:
                if vw & (c.r - c.srcc):
                    n = max(n, tbl_rw)
                elif vw & c.srcc:
                    if vw == c.srcc and c.op == p.op:
                        n = max(n, 2 if ps == 2 else 0)
                    else:
                        n = max(n, {2: 4, 4: 6, 8: 10, 16: 18}[ps])
            elif vw & (c.r | c.w):
                n = max(n, tbl_rw)
            if c.valu and not c.mfma and (p.srcc & c.w):
                n = max(n, {2: 1, 4: 3, 8: 7, 16: 15}[ps])
        if sw & c.r:
            if c.valu:
                n = max(n, 4 if (c.rdlane or c.op.startswith('v_writelane')) else 2)
            if c.vmem:
                n = max(n, 5)
        if ('exec', 0) in p.w:
            if c.valu:
                n = max(n, 5)
    if p.sdata and (p.sdata & c.w):
        n = max(n, 2)
    if p.salu and ('m0', 0) in p.w and (c.vmem or c.ds):
        n = max(n, 1)
    return n


class Asm:
    WINDOW = 24

    def __init__(self):
        self.lines = []
        self.hist = []
        self.pending = {}
        self.defined = set()
        self.nops = 0

    def raw(self, s):
        self.lines.append(s)

    def _advance(self, k):
        for h in self.hist:
            h[1] += k
        self.hist = [h for h in self.hist if h[1] < self.WINDOW]

    def __call__(self, text):
        for ln in text.strip().split('\n'):
            ln = ln.split(';')[0].strip()
            if not ln:
                continue
            if ln.endswith(':'):
                self.label(ln[:-1])
            else:
                self.ins(ln)

    def ins(self, text):
        c = Ins(text)
        k = 0
        for p, age in self.hist:
            k = max(k, need(p, c) - age)
        while k > 0:
            n = min(k, 16)
            self.lines.append('    s_nop %d' % (n - 1))
            self._advance(n); self.nops += 1
            k -= n
        isbr = c.op.startswith(('s_cbranch', 's_branch'))
        if isbr and c.ops[0] in self.defined:
            worst = 0
            for p, age in self.hist:
                if p.valu or p.sdata:
                    lim = 20 if p.mfma else 5
                    worst = max(worst, lim - age - 1)
            if worst > 0:
                self.lines.append('    s_nop %d' % (worst - 1))
                self._advance(worst)
        self.lines.append('    ' + text)
        self._advance(c.states())
        self.hist.append([c, 0])
        if isbr and c.ops[0] not in self.defined:
            self.pending.setdefault(c.ops[0], []).append([[p, a] for p, a in self.hist])
        if c.op in ('s_branch', 's_endpgm', 's_setpc_b64'):
            self.hist = []

    def label(self, name):
        self.lines.append(name + ':')
        self.defined.add(name)
        for snap in self.pending.pop(name, []):
            self.hist += snap

    def text(self):
        return '\n'.join(self.lines) + '\n'
```

```python
import sys, struct
sys.path.insert(0, 'exp')
from asmlib import Asm

NAME = 'recurrent_scan__sliding_block_cached__mixer_channel_mlp__decode'
HEADER = open('cdna_kernels/' + NAME + '.s.ref').read().split('; Override launch geometry')[0]


def f2u(x):
    return '0x%08x' % struct.unpack('<I', struct.pack('<f', x))[0]


QS, HS, OS, SS, US = 0x10000, 0x50000, 0x80000, 0x100000, 0x120000
STAMP = 0x20000000
L_OP, L_ML, L_FLAG, L_CNT, L_Q, L_XN, L_YN, L_G = 0x0, 0x2000, 0x2080, 0x2084, 0x2100, 0x2200, 0x2600, 0x2a00
LDS_BYTES = 0x2e00
LOG2E = 1.4426950408889634
DPPM = 'row_mask:0xf bank_mask:0xf'
SPIN = 1 << 20


def gen(stamps=False, pol='nt', hs='sc0 sc1', hl='sc0 sc1', wo_late=True):
    a = Asm()
    nst = [0]

    def stamp(k):
        if stamps:
            a(f's_memrealtime s[{60 + 2 * k}:{61 + 2 * k}]')

    def allreduce(op, v, t):
        for r in (8, 4, 2, 1):
            a(f'{op}_dpp v{v}, v{v}, v{v} row_ror:{r} {DPPM}')
        cross_rows(op, v, t)

    def cross_rows(op, v, t):
        a(f'v_mov_b32 v{t}, v{v}')
        a(f'v_permlane16_swap_b32 v{v}, v{t}')
        a(f'{op} v{v}, v{v}, v{t}')
        a(f'v_mov_b32 v{t}, v{v}')
        a(f'v_permlane32_swap_b32 v{v}, v{t}')
        a(f'{op} v{v}, v{v}, v{t}')

    def halve2(b):
        for k in range(4):
            a(f'v_permlane32_swap_b32 v{b + k}, v{b + k + 4}')
        for k in range(4):
            a(f'v_add_f32 v{b + k}, v{b + k}, v{b + k + 4}')
        for k in range(2):
            a(f'v_permlane16_swap_b32 v{b + k}, v{b + k + 2}')
        for k in range(2):
            a(f'v_add_f32 v{b + k}, v{b + k}, v{b + k + 2}')

    def halve3(b):
        halve2(b)
        a(f'v_add_f32_dpp v{b}, v{b}, v{b} row_ror:8 {DPPM}')
        a(f'v_add_f32_dpp v{b + 1}, v{b + 1}, v{b + 1} row_ror:8 {DPPM}')
        a(f'v_cndmask_b32 v{b}, v{b}, v{b + 1}, s[52:53]')

    def bf16r(dst, src):
        a(f'v_cvt_pk_bf16_f32 v{dst}, v{src}, v{src}')
        a(f'v_and_b32 v{dst}, s45, v{dst}')

    def layernorm():
        for d in range(4):
            a(f'v_lshlrev_b32 v{12 + 2 * d}, 16, v{8 + d}')
            a(f'v_and_b32 v{13 + 2 * d}, s45, v{8 + d}')
        a('v_add_f32 v20, v12, v13'); a('v_add_f32 v21, v14, v15'); a('v_add_f32 v22, v16, v17'); a('v_add_f32 v23, v18, v19')
        a('v_add_f32 v20, v20, v21'); a('v_add_f32 v22, v22, v23'); a('v_add_f32 v20, v20, v22')
        allreduce('v_add_f32', 20, 21)
        a(f'v_mul_f32 v20, {f2u(1 / 512)}, v20')
        a('v_sub_f32 v22, v12, v20'); a('v_mul_f32 v23, v22, v22')
        for k in range(1, 8):
            a(f'v_sub_f32 v22, v{12 + k}, v20'); a('v_fmac_f32 v23, v22, v22')
        allreduce('v_add_f32', 23, 21)
        a(f'v_mul_f32 v23, {f2u(1 / 512)}, v23')
        bf16r(20, 20)
        bf16r(23, 23)
        a(f'v_add_f32 v23, {f2u(1e-5)}, v23')
        bf16r(23, 23)
        a('v_sqrt_f32 v23, v23')
        bf16r(23, 23)
        a('v_rcp_f32 v24, v23')
        for d in range(4):
            lo, hi = 12 + 2 * d, 13 + 2 * d
            a(f'v_sub_f32 v{lo}, v{lo}, v20'); a(f'v_sub_f32 v{hi}, v{hi}, v20')
            a(f'v_cvt_pk_bf16_f32 v{hi}, v{lo}, v{hi}')
            a(f'v_lshlrev_b32 v{lo}, 16, v{hi}'); a(f'v_and_b32 v{hi}, s45, v{hi}')
            a(f'v_mul_f32 v25, v{lo}, v24'); a(f'v_mul_f32 v26, v{hi}, v24')
            a(f'v_fma_f32 v{lo}, -v25, v23, v{lo}'); a(f'v_fma_f32 v{hi}, -v26, v23, v{hi}')
            a(f'v_fmac_f32 v25, v{lo}, v24'); a(f'v_fmac_f32 v26, v{hi}, v24')
            a(f'v_cvt_pk_bf16_f32 v{8 + d}, v25, v26')

    def pair_gemv(w0, w1, xp, acc, t):
        for d in range(4):
            a(f'v_perm_b32 v{t + 2 * d}, v{w1 + d}, v{w0 + d}, s43')
            a(f'v_perm_b32 v{t + 2 * d + 1}, v{w1 + d}, v{w0 + d}, s44')
        for k in range(8):
            a(f'v_dot2c_f32_bf16 v{acc + k}, v{t + k}, v{xp}')

    def zero(b, n):
        for k in range(n):
            a(f'v_mov_b32 v{b + k}, 0')

    def tagcheck(tags, t):
        a(f'v_xor_b32 v{t}, s6, v{tags[0]}')
        for r in tags[1:]:
            a(f'v_bitop3_b32 v{t}, v{t}, v{r}, s6 bitop3:0xf6')
        a(f'v_cmp_ne_u32 vcc, 0, v{t}')

    def poll_tail(lbl, sleep=1):
        a(f's_cbranch_vccz {lbl}_ok')
        a('s_sub_u32 s7, s7, 1')
        a('s_cbranch_scc1 L_end')
        if sleep:
            a(f's_sleep {sleep}')
        a(f's_branch {lbl}')
        a(f'{lbl}_ok:')

    def gettag():
        a('s_waitcnt lgkmcnt(0)')
        a('s_add_u32 s6, s42, 0x9e3779b9')

    stamp(0)
    a('s_cmp_ge_u32 s2, 256')
    a('s_cbranch_scc1 L_end')
    a('s_load_dwordx16 s[16:31], s[0:1], 0')
    a('s_load_dwordx8 s[32:39], s[0:1], 64')
    a('s_load_dwordx2 s[40:41], s[0:1], 96')
    a('v_lshrrev_b32 v2, 6, v0')
    a('v_and_b32 v1, 63, v0')
    a('s_lshr_b32 s3, s2, 3')
    a('v_readfirstlane_b32 s5, v2')
    a('s_and_b32 s4, s2, 7')
    a('s_lshl_b32 s8, s3, 23')
    a('s_lshl_b32 s9, s4, 12')
    a('s_add_u32 s8, s8, s9')
    a('s_add_u32 s8, s8, 0x700000')
    a('v_lshlrev_b32 v3, 16, v2')
    a('v_lshl_add_u32 v3, v1, 4, v3')
    a('v_add_u32 v3, s8, v3')
    a('v_add_u32 v4, 0x8000, v3')
    a('v_mov_b32 v6, 0')
    a('v_mov_b32 v7, 0')
    a(f'v_mov_b32 v5, {L_FLAG}')
    a('ds_write_b64 v5, v[6:7]')
    a('s_mov_b32 s43, 0x05040100')
    a('s_mov_b32 s44, 0x07060302')
    a('s_mov_b32 s45, 0xffff0000')
    a(f's_mov_b32 s7, {SPIN}')
    a('s_mov_b32 s52, 0xff00ff00')
    a('s_mov_b32 s53, 0xff00ff00')
    a('v_and_b32 v2, 15, v1')
    a('v_lshlrev_b32 v2, 6, v2')
    a('v_and_or_b32 v2, v1, 48, v2')
    a('s_waitcnt lgkmcnt(0)')
    a('s_barrier')
    stamp(1)
    a('s_load_dword s42, s[40:41], 0')
    a('s_cmp_lt_u32 s5, 2')
    a('s_cbranch_scc1 L_special1')
    a('L_kv:')
    for base, r0 in (('s[18:19]', 64), ('s[20:21]', 96)):
        for i in range(8):
            vo = 3 if i < 4 else 4
            a(f'global_load_dwordx4 v[{r0 + 4 * i}:{r0 + 4 * i + 3}], v{vo}, {base} offset:{(i & 3) * 1024} {pol}')
    a('v_mov_b32 v6, 1')
    a(f'v_mov_b32 v5, {L_CNT}')
    a('s_mov_b64 exec, 1')
    a('ds_add_u32 v5, v6')
    a('s_mov_b64 exec, -1')
    stamp(2)
    a('s_cmp_lt_u32 s5, 2')
    a('s_cbranch_scc1 L_special2')
    a('L_main:')
    a(f'v_mov_b32 v5, {L_FLAG}')
    a('v_and_b32 v6, 15, v1')
    a('v_lshlrev_b32 v6, 4, v6')
    a('L_qw:')
    a('ds_read_b32 v7, v5')
    a(f'ds_read_b128 v[8:11], v6 offset:{L_Q}')
    a('s_waitcnt lgkmcnt(0)')
    a('v_cmp_eq_u32 vcc, 0, v7')
    poll_tail('L_qw', sleep=2)
    stamp(3)
    a('s_waitcnt vmcnt(8)')
    stamp(4)
    for i in range(8):
        a(f'v_dot2_f32_bf16 v{12 + i}, v{64 + 4 * i}, v8, 0')
    for d in range(1, 4):
        for i in range(8):
            a(f'v_dot2c_f32_bf16 v{12 + i}, v{64 + 4 * i + d}, v{8 + d}')
    for r in (8, 4, 2, 1):
        for i in range(8):
            a(f'v_add_f32_dpp v{12 + i}, v{12 + i}, v{12 + i} row_ror:{r} {DPPM}')
    for i in range(0, 8, 2):
        a(f'v_cvt_pk_bf16_f32 v{13 + i}, v{12 + i}, v{13 + i}')
    for i in range(0, 8, 2):
        a(f'v_lshlrev_b32 v{12 + i}, 16, v{13 + i}')
        a(f'v_and_b32 v{13 + i}, s45, v{13 + i}')
    for i in range(8):
        a(f'v_mul_f32 v{12 + i}, {f2u(128 ** -0.5)}, v{12 + i}')
    for i in range(0, 8, 2):
        a(f'v_cvt_pk_bf16_f32 v{13 + i}, v{12 + i}, v{13 + i}')
    for i in range(0, 8, 2):
        a(f'v_lshlrev_b32 v{12 + i}, 16, v{13 + i}')
        a(f'v_and_b32 v{13 + i}, s45, v{13 + i}')
    a('v_max3_f32 v28, v12, v13, v14'); a('v_max3_f32 v29, v15, v16, v17')
    a('v_max3_f32 v28, v28, v18, v19'); a('v_max_f32 v28, v28, v29')
    cross_rows('v_max_f32', 28, 29)
    a(f's_mov_b32 s8, {f2u(LOG2E)}')
    a('v_mul_f32 v28, s8, v28')
    for i in range(8):
        a(f'v_fma_f32 v{12 + i}, v{12 + i}, s8, -v28')
    for i in range(8):
        a(f'v_exp_f32 v{12 + i}, v{12 + i}')
    zero(20, 8)
    a('v_add_f32 v29, v12, v13'); a('v_add_f32 v30, v14, v15'); a('v_add_f32 v31, v16, v17'); a('v_add_f32 v32, v18, v19')
    a('v_add_f32 v29, v29, v30'); a('v_add_f32 v31, v31, v32'); a('v_add_f32 v29, v29, v31')
    cross_rows('v_add_f32', 29, 30)
    a('s_lshl_b32 s8, s5, 3')
    a(f's_add_u32 s8, s8, {L_ML}')
    a('v_mov_b32 v5, s8')
    a('ds_write_b64 v5, v[28:29]')
    for i in range(8):
        a(f's_waitcnt vmcnt({7 - i})')
        for d in range(4):
            a(f'v_lshlrev_b32 v{32 + 2 * d}, 16, v{96 + 4 * i + d}')
            a(f'v_and_b32 v{33 + 2 * d}, s45, v{96 + 4 * i + d}')
        pr = 12 + (i & ~1)
        sel = 'op_sel_hi:[1,0,1]' if i % 2 == 0 else 'op_sel:[0,1,0] op_sel_hi:[1,1,1]'
        for d in range(4):
            a(f'v_pk_fma_f32 v[{20 + 2 * d}:{21 + 2 * d}], v[{32 + 2 * d}:{33 + 2 * d}], v[{pr}:{pr + 1}], v[{20 + 2 * d}:{21 + 2 * d}] {sel}')
    stamp(5)
    halve2(20)
    a('s_lshl_b32 s8, s5, 9')
    a('v_lshrrev_b32 v5, 1, v2')
    a('v_add_u32 v5, s8, v5')
    a(f'ds_write_b64 v5, v[20:21] offset:{L_OP}')
    gettag()
    a('s_cmp_lt_u32 s5, 4')
    a('s_cbranch_scc1 L_service')
    a('s_cmp_eq_u32 s5, 4')
    a('s_cbranch_scc1 L_final')
    a('L_fin_others:')
    a('s_barrier')
    a('s_branch L_end')

    a('L_service:')
    a('v_lshrrev_b32 v5, 3, v1')
    a('v_lshlrev_b32 v5, 12, v5')
    a('v_and_b32 v6, 7, v1')
    a('v_lshl_add_u32 v5, v6, 4, v5')
    a('s_lshl_b32 s8, s3, 17')
    a('s_lshl_b32 s9, s5, 15')
    a('s_add_u32 s8, s8, s9')
    a('s_lshl_b32 s9, s4, 7')
    a('s_add_u32 s8, s8, s9')
    a('v_add_u32 v5, s8, v5')
    if wo_late:
        a(f'v_mov_b32 v6, {L_CNT}')
        a('L_cw:')
        a('ds_read_b32 v7, v6')
        a('s_waitcnt lgkmcnt(0)')
        a('v_cmp_ne_u32 vcc, 16, v7')
        poll_tail('L_cw', sleep=4)
    for i in range(4):
        a(f'global_load_dwordx4 v[{64 + 4 * i}:{67 + 4 * i}], v5, s[24:25] offset:{i * 1024} {pol}')
    stamp(6)
    a('v_lshrrev_b32 v6, 2, v1')
    a('v_and_b32 v6, 8, v6')
    a('v_and_b32 v7, 15, v1')
    a('v_xor_b32 v7, v7, v6')
    a('v_lshlrev_b32 v7, 3, v7')
    a('v_lshlrev_b32 v6, 9, v6')
    a('v_and_b32 v8, 31, v1')
    a('v_lshl_add_u32 v6, v8, 2, v6')
    a('s_lshl_b32 s8, s5, 7')
    a('v_add_u32 v6, s8, v6')
    a('s_lshl_b32 s9, s2, 11')
    a('s_lshl_b32 s8, s5, 8')
    a('s_add_u32 s8, s8, s9')
    a(f's_add_u32 s8, s8, {OS}')
    a('v_lshl_add_u32 v9, v8, 3, s8')
    a(f's_add_u32 s9, s9, {OS + 1024}')
    a('v_mov_b32 v10, s9')
    a('v_and_b32 v11, 7, v1')
    a('v_lshlrev_b32 v11, 11, v11')
    a('s_lshl_b32 s8, s3, 14')
    a(f's_add_u32 s8, s8, {OS}')
    a('v_add_u32 v11, s8, v11')
    a('v_lshrrev_b32 v12, 3, v1')
    a('v_lshlrev_b32 v12, 5, v12')
    a('s_lshl_b32 s8, s5, 8')
    a('v_add3_u32 v12, v12, s8, v11')
    a('v_mov_b32 v21, s6')
    a('v_mov_b32 v23, s6')
    a('v_mov_b32 v31, s6')
    a('s_barrier')
    stamp(7)
    a(f'ds_read_b64 v[14:15], v7 offset:{L_ML}')
    for n in range(0, 8, 2):
        a(f'ds_read2st64_b32 v[{32 + n}:{33 + n}], v6 offset0:{2 * n} offset1:{2 * n + 2}')
    a('s_waitcnt lgkmcnt(4)')
    a('v_mov_b32 v20, v14')
    for r in (8, 4, 2, 1):
        a(f'v_max_f32_dpp v20, v20, v20 row_ror:{r} {DPPM}')
    a('v_sub_f32 v14, v14, v20')
    a('v_exp_f32 v14, v14')
    a('s_waitcnt lgkmcnt(0)')
    a(f'v_mul_f32_dpp v30, v14, v32 row_newbcast:0 {DPPM}')
    for n in range(1, 8):
        a(f'v_fmac_f32_dpp v30, v14, v{32 + n} row_newbcast:{n} {DPPM}')
    a('v_mul_f32 v22, v14, v15')
    a('v_mov_b32 v16, v30')
    a(f'v_add_f32_dpp v22, v22, v22 row_ror:8 {DPPM}')
    a('v_permlane32_swap_b32 v30, v16')
    a(f'v_add_f32_dpp v22, v22, v22 row_ror:4 {DPPM}')
    a('v_add_f32 v30, v30, v16')
    a('s_mov_b32 exec_hi, 0')
    a(f'global_store_dwordx2 v9, v[30:31], s[40:41] {hs}')
    a('s_mov_b32 exec_hi, -1')
    a(f'v_add_f32_dpp v22, v22, v22 row_ror:2 {DPPM}')
    a(f'v_add_f32_dpp v22, v22, v22 row_ror:1 {DPPM}')
    a('s_cmp_lg_u32 s5, 0')
    a('s_cbranch_scc1 L_noml')
    a('s_mov_b64 exec, 1')
    a(f'global_store_dwordx4 v10, v[20:23], s[40:41] {hs}')
    a('s_mov_b64 exec, -1')
    a('L_noml:')
    stamp(8)
    a('L_pb:')
    a(f'global_load_dwordx4 v[32:35], v11, s[40:41] offset:1024 {hl}')
    a(f'global_load_dwordx4 v[36:39], v12, s[40:41] {hl}')
    a(f'global_load_dwordx4 v[40:43], v12, s[40:41] offset:16 {hl}')
    a('s_waitcnt vmcnt(0)')
    tagcheck([33, 35, 37, 39, 41, 43], 44)
    poll_tail('L_pb', sleep=0)
    stamp(9)
    O8 = ['quad_perm:[1,0,3,2]', 'quad_perm:[2,3,0,1]', 'row_half_mirror']
    a('v_mov_b32 v44, v32')
    for m in O8:
        a(f'v_max_f32_dpp v44, v44, v44 {m} {DPPM}')
    a('v_sub_f32 v32, v32, v44')
    a('v_exp_f32 v32, v32')
    zero(20, 8)
    a('v_mul_f32 v34, v32, v34')
    for r in (36, 38, 40, 42):
        a(f'v_mul_f32 v{r}, v32, v{r}')
    for m in O8:
        for r in (34, 36, 38, 40, 42):
            a(f'v_add_f32_dpp v{r}, v{r}, v{r} {m} {DPPM}')
    a('v_rcp_f32 v34, v34')
    for r in (36, 38, 40, 42):
        a(f'v_mul_f32 v{r}, v34, v{r}')
    a('v_cvt_pk_bf16_f32 v36, v36, v38')
    a('v_cvt_pk_bf16_f32 v40, v40, v42')
    pair_gemv(64, 68, 36, 20, 48)
    pair_gemv(72, 76, 40, 20, 56)
    halve3(20)
    a('s_lshl_b32 s8, s5, 8')
    a('v_lshl_add_u32 v5, v1, 2, s8')
    a(f'ds_write_b32 v5, v20 offset:{L_G}')
    a('s_waitcnt lgkmcnt(0)')
    a('s_barrier')
    a('s_cmp_lg_u32 s5, 0')
    a('s_cbranch_scc1 L_end')
    a(f'ds_read2st64_b32 v[22:23], v5 offset0:{L_G // 256 + 1} offset1:{L_G // 256 + 2}')
    a(f'ds_read_b32 v24, v5 offset:{L_G + 768}')
    a('v_and_b32 v6, 7, v1')
    a('v_lshlrev_b32 v6, 6, v6')
    a('v_and_or_b32 v6, v1, 56, v6')
    a('s_lshl_b32 s8, s4, 5')
    a('s_add_u32 s8, s8, s3')
    a('s_lshl_b32 s8, s8, 9')
    a(f's_add_u32 s8, s8, {SS}')
    a('v_add_u32 v6, s8, v6')
    a('v_mov_b32 v21, s6')
    a('s_waitcnt lgkmcnt(0)')
    a('v_add_f32 v20, v20, v22')
    a('v_add_f32 v23, v23, v24')
    a('v_add_f32 v20, v20, v23')
    a(f'global_store_dwordx2 v6, v[20:21], s[40:41] {hs}')
    stamp(10)
    a('s_branch L_end')

    a('L_final:')
    a('s_and_b32 s8, s3, 7')
    a('s_cmp_lg_u32 s8, s4')
    a('s_cbranch_scc1 L_fin_others')
    a('s_lshr_b32 s8, s3, 3')
    a('s_lshl_b32 s9, s4, 2')
    a('s_add_u32 s9, s9, s8')
    a('s_lshl_b32 s9, s9, 5')
    a('v_and_b32 v6, 7, v1')
    a('v_lshl_add_u32 v5, v6, 2, s9')
    a('global_load_dword v8, v5, s[16:17]')
    a('global_load_dword v9, v5, s[34:35]')
    a('v_lshrrev_b32 v7, 3, v1')
    a('v_lshlrev_b32 v7, 9, v7')
    a('v_lshl_add_u32 v7, v6, 4, v7')
    a('s_lshl_b32 s8, s8, 7')
    a('s_lshl_b32 s9, s4, 14')
    a('s_add_u32 s8, s8, s9')
    a(f's_add_u32 s8, s8, {US + 4096}')
    a('v_add_u32 v7, s8, v7')
    a('v_add_u32 v10, 0x2000, v7')
    a('s_mov_b32 s46, 0')
    a('L_ga:')
    a(f'global_load_dwordx4 v[32:35], v7, s[40:41] offset:-4096 {hl}')
    a(f'global_load_dwordx4 v[36:39], v7, s[40:41] {hl}')
    a(f'global_load_dwordx4 v[40:43], v10, s[40:41] offset:-4096 {hl}')
    a(f'global_load_dwordx4 v[44:47], v10, s[40:41] {hl}')
    a('s_waitcnt vmcnt(0)')
    tagcheck([33, 35, 37, 39, 41, 43, 45, 47], 48)
    poll_tail('L_ga', sleep=0)
    a('v_add_f32 v32, v32, v36'); a('v_add_f32 v34, v34, v38')
    a('v_add_f32 v40, v40, v44'); a('v_add_f32 v42, v42, v46')
    a('v_add_f32 v32, v32, v40'); a('v_add_f32 v34, v34, v42')
    a(f'v_add_f32_dpp v32, v32, v32 row_ror:8 {DPPM}')
    a(f'v_add_f32_dpp v34, v34, v34 row_ror:8 {DPPM}')
    a('v_mov_b32 v33, v32'); a('v_mov_b32 v35, v34')
    a('v_permlane16_swap_b32 v32, v33'); a('v_permlane16_swap_b32 v34, v35')
    a('v_add_f32 v32, v32, v33'); a('v_add_f32 v34, v34, v35')
    a('v_mov_b32 v33, v32'); a('v_mov_b32 v35, v34')
    a('v_permlane32_swap_b32 v32, v33'); a('v_permlane32_swap_b32 v34, v35')
    a('v_add_f32 v32, v32, v33'); a('v_add_f32 v34, v34, v35')
    a('v_cvt_pk_bf16_f32 v34, v32, v34')
    a('v_lshlrev_b32 v32, 16, v34')
    a('v_and_b32 v34, s45, v34')
    a('s_cmp_lg_u32 s46, 0')
    a('s_cbranch_scc1 L_out')
    a('v_lshlrev_b32 v12, 16, v9'); a('v_and_b32 v13, s45, v9')
    a('v_add_f32 v12, v12, v32'); a('v_add_f32 v13, v13, v34')
    a('v_cvt_pk_bf16_f32 v13, v12, v13')
    a('v_lshlrev_b32 v12, 16, v13'); a('v_and_b32 v13, s45, v13')
    a(f'v_mul_f32 v14, {f2u(-LOG2E)}, v12'); a(f'v_mul_f32 v15, {f2u(-LOG2E)}, v13')
    a('v_exp_f32 v14, v14'); a('v_exp_f32 v15, v15')
    a('v_add_f32 v14, 1.0, v14'); a('v_add_f32 v15, 1.0, v15')
    a('v_rcp_f32 v14, v14'); a('v_rcp_f32 v15, v15')
    a('v_mul_f32 v12, v12, v14'); a('v_mul_f32 v13, v13, v15')
    a('v_cvt_pk_bf16_f32 v13, v12, v13')
    a('v_lshlrev_b32 v12, 16, v13'); a('v_and_b32 v13, s45, v13')
    a('v_lshlrev_b32 v14, 16, v8'); a('v_and_b32 v15, s45, v8')
    a(f'v_subrev_u32 v7, {US - SS}, v7')
    a(f'v_subrev_u32 v10, {US - SS}, v10')
    a('s_mov_b32 s46, 1')
    stamp(6)
    a('s_barrier')
    a('s_barrier')
    stamp(7)
    a('s_branch L_ga')
    a('L_out:')
    stamp(8)
    a('v_mul_f32 v32, v32, v12'); a('v_mul_f32 v34, v34, v13')
    a('v_cvt_pk_bf16_f32 v34, v32, v34')
    a('v_lshlrev_b32 v32, 16, v34'); a('v_and_b32 v34, s45, v34')
    a('v_add_f32 v32, v32, v14'); a('v_add_f32 v34, v34, v15')
    a('v_cvt_pk_bf16_f32 v32, v32, v34')
    a('s_mov_b64 exec, 0xff')
    a('global_store_dword v5, v32, s[36:37]')
    a('s_cmp_lg_u32 s2, 0')
    a('s_cbranch_scc1 L_end2')
    a('s_mov_b64 exec, 1')
    a('v_mov_b32 v6, 0')
    a('v_mov_b32 v7, s6')
    a('global_store_dword v6, v7, s[40:41]')
    a('L_end2:')
    a('s_mov_b64 exec, -1')
    stamp(9)
    a('s_branch L_end')

    a('L_special1:')
    a('v_lshlrev_b32 v5, 4, v1')
    a('global_load_dwordx4 v[8:11], v5, s[16:17]')
    a('s_cmp_eq_u32 s5, 1')
    a('s_cbranch_scc1 L_mlp1')
    a('v_lshrrev_b32 v6, 4, v1')
    a('v_lshlrev_b32 v6, 17, v6')
    a('v_and_b32 v7, 15, v1')
    a('v_lshl_add_u32 v6, v7, 4, v6')
    a('s_lshl_b32 s8, s4, 19')
    a('s_lshl_b32 s9, s3, 8')
    a('s_add_u32 s8, s8, s9')
    a('v_add_u32 v6, s8, v6')
    for i in range(16):
        a(f'global_load_dwordx4 v[{64 + 4 * i}:{67 + 4 * i}], v6, s[22:23] {pol}')
        if i < 15:
            a('v_add_u32 v6, 0x2000, v6')
    a('s_waitcnt vmcnt(16)')
    layernorm()
    a(f'ds_write_b128 v5, v[8:11] offset:{L_XN}')
    a('v_lshrrev_b32 v6, 4, v1')
    a('s_lshl_b32 s8, s4, 7')
    a('v_lshl_add_u32 v6, v6, 5, s8')
    a(f'ds_read_b128 v[40:43], v6 offset:{L_XN}')
    a(f'ds_read_b128 v[44:47], v6 offset:{L_XN + 16}')
    zero(20, 8)
    gettag()
    for t in range(8):
        a(f's_waitcnt vmcnt({14 - 2 * t})')
        pair_gemv(64 + 8 * t, 68 + 8 * t, 40 + t, 20, 48 + 8 * (t & 1))
    halve2(20)
    a('s_lshl_b32 s8, s2, 10')
    a(f's_add_u32 s8, s8, {QS}')
    a('v_add_u32 v6, s8, v2')
    a('v_mov_b32 v22, v21')
    a('v_mov_b32 v21, s6')
    a('v_mov_b32 v23, s6')
    a(f'global_store_dwordx4 v6, v[20:23], s[40:41] {hs}')
    stamp(11)
    a('s_branch L_kv')
    a('L_mlp1:')
    a('s_mul_i32 s46, s3, 43')
    a('s_add_u32 s47, s46, 43')
    a('s_lshr_b32 s46, s46, 3')
    a('s_lshr_b32 s47, s47, 3')
    a('s_sub_u32 s47, s47, s46')
    a('v_and_b32 v7, 7, v1')
    a('v_lshrrev_b32 v6, 3, v1')
    a('v_cmp_gt_u32 s[50:51], s47, v7')
    a('v_add_u32 v12, s46, v7')
    a('v_lshlrev_b32 v13, 3, v12')
    a('v_add_lshl_u32 v13, v13, v6, 1')
    a('s_lshl_b32 s8, s4, 6')
    a('v_lshl_add_u32 v14, v6, 3, s8')
    a('s_movk_i32 s9, 2752')
    a('v_mul_lo_u32 v14, v14, s9')
    a('v_lshl_add_u32 v14, v12, 4, v14')
    a('s_mov_b64 exec, s[50:51]')
    for i in range(8):
        a(f'global_load_dwordx4 v[{64 + 4 * i}:{67 + 4 * i}], v14, s[28:29] {pol}')
        if i < 7:
            a('v_add_u32 v14, 2752, v14')
    a('global_load_ushort v60, v13, s[30:31]')
    a('s_mov_b64 exec, -1')
    a('s_lshl_b32 s8, s46, 13')
    a('s_lshl_b32 s9, s4, 7')
    a('s_add_u32 s8, s8, s9')
    a('v_lshlrev_b32 v14, 10, v6')
    a('v_lshl_add_u32 v14, v7, 4, v14')
    a('v_add_u32 v14, s8, v14')
    zero(56, 4)
    for i in range(5):
        a(f'global_load_dwordx4 v[{36 + 4 * i}:{39 + 4 * i}], v14, s[32:33] {pol}')
        a('v_add_u32 v14, 0x2000, v14')
    a('s_waitcnt vmcnt(14)')
    a('s_cmp_lt_u32 s47, 6')
    a('s_cbranch_scc1 L_no6')
    a(f'global_load_dwordx4 v[56:59], v14, s[32:33] {pol}')
    a('L_no6:')
    layernorm()
    layernorm()
    a(f'ds_write_b128 v5, v[8:11] offset:{L_YN}')
    a('s_lshl_b32 s8, s4, 7')
    a('v_lshl_add_u32 v6, v6, 4, s8')
    a(f'ds_read_b128 v[28:31], v6 offset:{L_YN}')
    zero(20, 8)
    gettag()
    a('s_waitcnt vmcnt(5)')
    for t in range(4):
        pair_gemv(64 + 8 * t, 68 + 8 * t, 28 + t, 20, 96 + 8 * (t & 1))
    halve3(20)
    a('s_lshl_b32 s8, s2, 9')
    a(f's_add_u32 s8, s8, {HS}')
    a('v_lshl_add_u32 v6, v1, 3, s8')
    a('v_mov_b32 v21, s6')
    a(f'global_store_dwordx2 v6, v[20:21], s[40:41] {hs}')
    stamp(11)
    a('s_branch L_kv')

    a('L_special2:')
    a('s_cmp_eq_u32 s5, 1')
    a('s_cbranch_scc1 L_mlp2')
    a('s_lshl_b32 s8, s3, 13')
    a(f's_add_u32 s8, s8, {QS + 4096}')
    a('v_add_u32 v6, s8, v2')
    a('L_pq:')
    for p in range(8):
        a(f'global_load_dwordx4 v[{28 + 4 * p}:{31 + 4 * p}], v6, s[40:41] offset:{p * 1024 - 4096} {hl}')
    a('s_waitcnt vmcnt(0)')
    tagcheck([29 + 2 * k for k in range(16)], 60)
    poll_tail('L_pq', sleep=1)
    for k in (0, 2):
        a(f'v_add_f32 v{28 + k}, v{28 + k}, v{32 + k}'); a(f'v_add_f32 v{36 + k}, v{36 + k}, v{40 + k}')
        a(f'v_add_f32 v{44 + k}, v{44 + k}, v{48 + k}'); a(f'v_add_f32 v{52 + k}, v{52 + k}, v{56 + k}')
        a(f'v_add_f32 v{28 + k}, v{28 + k}, v{36 + k}'); a(f'v_add_f32 v{44 + k}, v{44 + k}, v{52 + k}')
        a(f'v_add_f32 v{28 + k}, v{28 + k}, v{44 + k}')
    a('v_cvt_pk_bf16_f32 v28, v28, v30')
    a('v_lshrrev_b32 v6, 2, v2')
    a(f'ds_write_b32 v6, v28 offset:{L_Q}')
    a(f'v_mov_b32 v5, {L_FLAG}')
    a('v_mov_b32 v7, 1')
    a('s_waitcnt lgkmcnt(0)')
    a('ds_write_b32 v5, v7')
    stamp(12)
    a('s_branch L_main')
    a('L_mlp2:')
    a('s_lshl_b32 s8, s3, 12')
    a(f's_add_u32 s8, s8, {HS}')
    a('v_lshl_add_u32 v6, v1, 3, s8')
    a('L_ph:')
    for p in range(8):
        a(f'global_load_dwordx2 v[{8 + 2 * p}:{9 + 2 * p}], v6, s[40:41] offset:{p * 512} {hl}')
    a('s_waitcnt vmcnt(0)')
    tagcheck([9 + 2 * k for k in range(8)], 24)
    poll_tail('L_ph', sleep=1)
    a('v_add_f32 v8, v8, v10'); a('v_add_f32 v12, v12, v14'); a('v_add_f32 v16, v16, v18'); a('v_add_f32 v20, v20, v22')
    a('v_add_f32 v8, v8, v12'); a('v_add_f32 v16, v16, v20'); a('v_add_f32 v8, v8, v16')
    bf16r(8, 8)
    a('v_lshlrev_b32 v60, 16, v60')
    a('v_add_f32 v8, v8, v60')
    bf16r(8, 8)
    c0 = -2.0 * 0.7978845608028654 * LOG2E
    a('v_mul_f32 v9, v8, v8')
    a(f'v_mov_b32 v10, {f2u(c0)}')
    a(f'v_fmamk_f32 v9, v9, {f2u(c0 * 0.044715)}, v10')
    a('v_mul_f32 v9, v9, v8')
    a('v_exp_f32 v9, v9')
    a('v_add_f32 v9, 1.0, v9')
    a('v_rcp_f32 v9, v9')
    a('v_mul_f32 v8, v8, v9')
    a('v_cndmask_b32 v8, 0, v8, s[50:51]')
    for i in range(6):
        a(f'ds_swizzle_b32 v{10 + i}, v8 offset:{(i << 5) | 0x18}')
    zero(20, 8)
    a('s_waitcnt lgkmcnt(0)')
    for t in range(3):
        a(f'v_cvt_pk_bf16_f32 v{10 + 2 * t}, v{10 + 2 * t}, v{11 + 2 * t}')
    for t in range(3):
        pair_gemv(36 + 8 * t, 40 + 8 * t, 10 + 2 * t, 20, 28)
    halve3(20)
    a('v_and_b32 v6, 7, v1')
    a('v_lshlrev_b32 v6, 6, v6')
    a('v_and_or_b32 v6, v1, 56, v6')
    a('s_lshl_b32 s8, s4, 5')
    a('s_add_u32 s8, s8, s3')
    a('s_lshl_b32 s8, s8, 9')
    a(f's_add_u32 s8, s8, {US}')
    a('v_add_u32 v6, s8, v6')
    a('v_mov_b32 v21, s6')
    a(f'global_store_dwordx2 v6, v[20:21], s[40:41] {hs}')
    stamp(12)
    a('s_branch L_main')

    a('L_end:')
    if stamps:
        a('s_cmp_ge_u32 s2, 256')
        a('s_cbranch_scc1 L_end3')
        stamp(13)
        a('s_waitcnt lgkmcnt(0)')
        a('s_mov_b64 exec, 1')
        a('s_lshl_b32 s8, s2, 4')
        a('s_add_u32 s8, s8, s5')
        a('s_mul_i32 s8, s8, 112')
        a(f's_add_u32 s8, s8, {STAMP}')
        a('v_mov_b32 v1, s8')
        for k in range(14):
            a(f'v_mov_b32 v2, s{60 + 2 * k}'); a(f'v_mov_b32 v3, s{61 + 2 * k}')
            a(f'global_store_dwordx2 v1, v[2:3], s[40:41] offset:{8 * k}')
        a('L_end3:')
    a('s_endpgm')

    out = HEADER
    out += f'; @launch grid=(256,1,1) block=(1024,1,1) lds={LDS_BYTES}\n'
    out += '.amdgcn_target "amdgcn-amd-amdhsa--gfx950"\n.text\n'
    out += f'.globl {NAME}_kernel\n.p2align 8\n.type {NAME}_kernel,@function\n{NAME}_kernel:\n'
    if stamps:
        out += ''.join(f'    s_mov_b64 s[{60 + 2 * k}:{61 + 2 * k}], 0\n' for k in range(14))
    out += a.text()
    out += f'''.section .rodata,"a"
.p2align 6
.amdhsa_kernel {NAME}_kernel
  .amdhsa_next_free_vgpr 128
  .amdhsa_next_free_sgpr 96
  .amdhsa_accum_offset 128
  .amdhsa_group_segment_fixed_size 0
  .amdhsa_kernarg_size 104
  .amdhsa_user_sgpr_count 2
  .amdhsa_user_sgpr_kernarg_segment_ptr 1
  .amdhsa_system_sgpr_workgroup_id_x 1
  .amdhsa_float_denorm_mode_32 3
.end_amdhsa_kernel
'''
    return out


if __name__ == '__main__':
    open('k1.s', 'w').write(gen())
    open('k1s.s', 'w').write(gen(stamps=True))
```

```python
import sys, struct
sys.path.insert(0, 'exp')
from asmlib import Asm

NAME = 'recurrent_scan__sliding_block_cached__mixer_channel_mlp__decode'
HEADER = open('cdna_kernels/' + NAME + '.s.ref').read().split('; Override launch geometry')[0]


DOC = '''; ---------------------------------------------------------------------------------------------
; Hand-offs go through d_ws as 8-byte {data, tag} granules; tag = f(epoch word found in d_ws), the
; ---------------------------------------------------------------------------------------------
'''


def f2u(x):
    return '0x%08x' % struct.unpack('<I', struct.pack('<f', x))[0]


QS, HS, OS, SS, US = 0x10000, 0x50000, 0x80000, 0x100000, 0x120000
STAMP = 0x20000000
L_OP, L_ML, L_FLAG, L_CNT, L_CN1, L_CN3 = 0x0, 0x1000, 0x1040, 0x1044, 0x1048, 0x104c
L_CN4 = 0x1050
L_Q, L_XN, L_YN, L_W = 0x1100, 0x1200, 0x1600, 0x2000
L_OB, OBS = 0x6000, 272
LDS_BYTES = 0x6900
LOG2E = 1.4426950408889634
DPPM = 'row_mask:0xf bank_mask:0xf'
SPIN = 1 << 20
NST = 14
NW = 12
MF = 'v_mfma_f32_16x16x32_bf16'
QX1 = 'quad_perm:[1,0,3,2]'


def gen(stamps=False, pol='nt', amp=0, ampst=13, posA=6, PB=1, PC=4, gapb=0, gapc=0, stouch=6, kfirst=0,
        w1pol='nt', ground=2, gcnt=8, fast=1, knock='', uat='now', hsw=4, ad=None, par=None, dma=1, merge=0, delb=0, hsc='sc1', hlc='sc1', hlb='sc1', b2=1, selfb=1, uearly=1, swarm=1, preb1=1, pw=0, sp=(), spn=32, spw=0, big=0, cpf=1, w2late=1, et=35, b1late=1, xlast=0, epf=0, epw=3, lazy=3, eps='', ost='nt', b4=1, prio=0):
    a = Asm()
    hs, hl = 'sc1', 'sc1'

    def stamp(k):
        if stamps:
            a(f's_memrealtime s[{60 + 2 * k}:{61 + 2 * k}]')

    def swapop(op, v, t, which):
        a(f'v_mov_b32 v{t}, v{v}')
        a(f'v_permlane{which}_swap_b32 v{v}, v{t}')
        a(f'{op} v{v}, v{v}, v{t}')

    def allreduce(op, v, t):
        for r in (8, 4, 2, 1):
            a(f'{op}_dpp v{v}, v{v}, v{v} row_ror:{r} {DPPM}')
        swapop(op, v, t, 16)
        swapop(op, v, t, 32)

    def halve3(b):
        for k in range(4):
            a(f'v_permlane32_swap_b32 v{b + k}, v{b + k + 4}')
        for k in range(4):
            a(f'v_add_f32 v{b + k}, v{b + k}, v{b + k + 4}')
        for k in range(2):
            a(f'v_permlane16_swap_b32 v{b + k}, v{b + k + 2}')
        for k in range(2):
            a(f'v_add_f32 v{b + k}, v{b + k}, v{b + k + 2}')
        a(f'v_add_f32_dpp v{b}, v{b}, v{b} row_ror:8 {DPPM}')
        a(f'v_add_f32_dpp v{b + 1}, v{b + 1}, v{b + 1} row_ror:8 {DPPM}')
        a(f'v_cndmask_b32 v{b}, v{b}, v{b + 1}, s[52:53]')

    def bf16r(dst, src):
        a(f'v_cvt_pk_bf16_f32 v{dst}, v{src}, v{src}')
        a(f'v_and_b32 v{dst}, s45, v{dst}')

    def layernorm():
        for d in range(4):
            a(f'v_lshlrev_b32 v{12 + 2 * d}, 16, v{8 + d}')
            a(f'v_and_b32 v{13 + 2 * d}, s45, v{8 + d}')
        a('v_add_f32 v20, v12, v13'); a('v_add_f32 v21, v14, v15'); a('v_add_f32 v22, v16, v17'); a('v_add_f32 v23, v18, v19')
        a('v_add_f32 v20, v20, v21'); a('v_add_f32 v22, v22, v23'); a('v_add_f32 v20, v20, v22')
        allreduce('v_add_f32', 20, 21)
        a(f'v_mul_f32 v20, {f2u(1 / 512)}, v20')
        a('v_sub_f32 v22, v12, v20'); a('v_mul_f32 v23, v22, v22')
        for k in range(1, 8):
            a(f'v_sub_f32 v22, v{12 + k}, v20'); a('v_fmac_f32 v23, v22, v22')
        allreduce('v_add_f32', 23, 21)
        a(f'v_mul_f32 v23, {f2u(1 / 512)}, v23')
        bf16r(20, 20)
        bf16r(23, 23)
        a(f'v_add_f32 v23, {f2u(1e-5)}, v23')
        bf16r(23, 23)
        a('v_sqrt_f32 v23, v23')
        bf16r(23, 23)
        a('v_rcp_f32 v24, v23')
        for d in range(4):
            lo, hi = 12 + 2 * d, 13 + 2 * d
            a(f'v_sub_f32 v{lo}, v{lo}, v20'); a(f'v_sub_f32 v{hi}, v{hi}, v20')
            a(f'v_cvt_pk_bf16_f32 v{hi}, v{lo}, v{hi}')
            a(f'v_lshlrev_b32 v{lo}, 16, v{hi}'); a(f'v_and_b32 v{hi}, s45, v{hi}')
            a(f'v_mul_f32 v25, v{lo}, v24'); a(f'v_mul_f32 v26, v{hi}, v24')
            a(f'v_fma_f32 v{lo}, -v25, v23, v{lo}'); a(f'v_fma_f32 v{hi}, -v26, v23, v{hi}')
            a(f'v_fmac_f32 v25, v{lo}, v24'); a(f'v_fmac_f32 v26, v{hi}, v24')
            a(f'v_cvt_pk_bf16_f32 v{8 + d}, v25, v26')

    def pair_gemv(w0, w1, xp, acc, t):
        for d in range(4):
            a(f'v_perm_b32 v{t + 2 * d}, v{w1 + d}, v{w0 + d}, s43')
            a(f'v_perm_b32 v{t + 2 * d + 1}, v{w1 + d}, v{w0 + d}, s44')
        for k in range(8):
            a(f'v_dot2c_f32_bf16 v{acc + k}, v{t + k}, v{xp}')

    def zero(b, n):
        for k in range(n):
            a(f'v_mov_b32 v{b + k}, 0')

    def tagcheck(tags, t, stag='s6'):
        a(f'v_xor_b32 v{t}, {stag}, v{tags[0]}')
        for r in tags[1:]:
            a(f'v_bitop3_b32 v{t}, v{t}, v{r}, {stag} bitop3:0xf6')
        a(f'v_cmp_ne_u32 vcc, 0, v{t}')

    def poll_tail(lbl, sleep=1):
        a(f's_cbranch_vccz {lbl}_ok')
        a('s_sub_u32 s7, s7, 1')
        a('s_cbranch_scc1 L_end')
        if sleep:
            a(f's_sleep {sleep}')
        a(f's_branch {lbl}')
        a(f'{lbl}_ok:')

    def ldswait(lbl, addr, n, va, sleep):
        a(f'v_mov_b32 v{va}, {addr}')
        a(f'{lbl}:')
        a(f'ds_read_b32 v{va + 1}, v{va}')
        a('s_waitcnt lgkmcnt(0)')
        a(f'v_cmp_gt_u32 vcc, {n}, v{va + 1}')
        poll_tail(lbl, sleep=sleep)

    def masks(b, t):
        a(f'v_and_b32 v{t}, 1, v2')
        a(f'v_lshlrev_b32 v{t}, 4, v{t}')
        a(f'v_mov_b32 v{t + 1}, 0xffff')
        a(f'v_lshlrev_b32 v{t}, v{t}, v{t + 1}')
        a(f'v_lshrrev_b32 v{t + 1}, 1, v2')
        for d in range(4):
            a(f'v_cmp_eq_u32 vcc, {d}, v{t + 1}')
            a(f'v_cndmask_b32 v{b + d}, 0, v{t}, vcc')

    def mktag():
        a('s_add_u32 s6, s42, 0x9e3779b9')
        a('s_and_b32 s6, s6, -16')

    def tagA():
        a('s_getreg_b32 s49, hwreg(HW_REG_XCC_ID, 0, 4)')
        a('s_or_b32 s49, s49, s6')

    def exchange(lbl, store, loads, tags, t, after=None):
        if 's' not in knock:
            a(store + ('' if fast else ' ' + hs))
        stamp(3)
        if after:
            after()
        a('s_mov_b32 s48, %d' % (0 if fast else 1))
        if 'q' in knock:
            return
        ldswait(lbl + 'w', L_CN1, gcnt, 62, 4)
        stamp(5)
        a(f's_mov_b32 s14, {lazy if fast else -1}')
        a(f'{lbl}:')
        for ln in loads:
            a(ln + ' ' + hl)
        a('s_waitcnt vmcnt(0)')
        tagcheck(tags, t, 's49')
        a(f's_cbranch_vccz {lbl}_ok')
        a(f'v_cmp_lt_u32 vcc, 15, v{t}')
        a(f's_cbranch_vccz {lbl}_far')
        a('s_cmp_lg_u32 s14, 0')
        a(f's_cbranch_scc1 {lbl}_r')
        a(store + ' ' + hs)
        a(f'{lbl}_r:')
        a('s_sub_u32 s14, s14, 1')
        a('s_sub_u32 s7, s7, 1')
        a('s_cbranch_scc1 L_end')
        a('s_sleep 1')
        a(f's_branch {lbl}')
        a(f'{lbl}_far:')
        a(store + ' ' + hs)
        a('s_mov_b32 s48, 1')
        a(f'{lbl}_ok:')

    def glist(r, va, vb):
        hl = hlc
        return [f'global_load_dwordx4 v[{r}:{r + 3}], v{va}, s[40:41] offset:-4096 {hl}',
                f'global_load_dwordx4 v[{r + 4}:{r + 7}], v{va}, s[40:41] {hl}',
                f'global_load_dwordx4 v[{r + 8}:{r + 11}], v{vb}, s[40:41] offset:-4096 {hl}',
                f'global_load_dwordx4 v[{r + 12}:{r + 15}], v{vb}, s[40:41] {hl}']

    def gsum1(r, d):
        a(f'v_add_f32 v{d}, v{r}, v{r + 4}'); a(f'v_add_f32 v{d + 1}, v{r + 2}, v{r + 6}')
        a(f'v_add_f32 v{d + 2}, v{r + 8}, v{r + 12}'); a(f'v_add_f32 v{d + 3}, v{r + 10}, v{r + 14}')

    def gsum2(d):
        a(f'v_add_f32 v{d}, v{d}, v{d + 2}'); a(f'v_add_f32 v{d + 1}, v{d + 1}, v{d + 3}')
        a(f'v_permlane32_swap_b32 v{d}, v{d + 1}')
        a(f'v_add_f32 v{d}, v{d}, v{d + 1}')
        swapop('v_add_f32', d, d + 1, 16)
        a(f'v_add_f32_dpp v{d}, v{d}, v{d} row_ror:8 {DPPM}')
        bf16r(d, d)

    def common():
        a('s_lshl_b32 s10, s3, 3')
        a('s_add_u32 s10, s10, s4')
        a('s_mov_b32 s45, 0xffff0000')
        a(f's_mov_b32 s7, {SPIN}')

    stamp(0)
    a('s_load_dwordx16 s[16:31], s[0:1], 0')
    a('v_lshrrev_b32 v2, 6, v0')
    a('s_cmpk_ge_u32 s2, 256')
    a('s_cbranch_scc1 L_end')
    a('v_readfirstlane_b32 s5, v2')
    a('s_load_dwordx8 s[32:39], s[0:1], 64')
    a('s_load_dwordx2 s[40:41], s[0:1], 96')
    a('s_and_b32 s8, s5, 14')
    a('s_cmp_lg_u32 s8, 2')
    a('s_cbranch_scc1 L_not23')
    if epf:
        a('s_getpc_b64 s[12:13]')
        for i in range(epf):
            a(f's_load_dword s{88 + i}, s[12:13], {128 * (i + 2)}')
    if et & 8:
        a('s_mov_b32 s9, 0x200000')
    a('v_mov_b64 v[8:9], 0')
    a('v_mov_b64 v[10:11], 0')
    a(f'ds_write_b128 v8, v[8:11] offset:{L_FLAG}')
    a('s_waitcnt lgkmcnt(0)')
    if et & 2:
        a('s_load_dword s88, s[28:29], 0')
    if et & 8:
        a('s_load_dword s89, s[22:23], 0')
        a('s_load_dword s90, s[22:23], s9')
    if et & 16:
        a('s_load_dword s42, s[40:41], 0')
    a('s_barrier')
    a('s_branch L_h23')
    a('L_not23:')
    a('s_and_b32 s3, s2, 7')
    a('s_bfe_u32 s9, s2, 0x20003')
    a('s_lshl2_add_u32 s3, s3, s9')
    a('s_lshr_b32 s4, s2, 5')
    a('v_and_b32 v1, 63, v0')
    a('v_and_b32 v2, 15, v0')
    a('v_lshrrev_b32 v3, 4, v1')
    a('s_sub_u32 s11, s5, 4')
    a('s_cbranch_scc1 L_01')
    a('s_and_b32 s8, s11, 3')
    a('s_xor_b32 s8, s8, s4')
    a('s_lshl3_add_u32 s9, s9, s11')
    a('s_lshl3_add_u32 s8, s9, s8')
    a('s_lshl_b32 s9, s3, 11')
    a('s_add_u32 s8, s8, s9')
    a('s_addk_i32 s8, 0x700')
    a('s_lshl_b32 s8, s8, 12')
    a('v_and_b32 v4, 12, v0')
    a('v_add_lshl_u32 v4, v4, v3, 2')
    a('v_and_or_b32 v4, v0, 3, v4')
    a('v_lshl_add_u32 v4, v4, 4, s8')
    if et & 32:
        a('s_cmp_lg_u32 s11, 0')
    a('s_waitcnt lgkmcnt(0)')
    if et & 32:
        a('s_cbranch_scc1 L_net')
    if et & 1:
        a('s_load_dword s88, s[18:19], s8')
    if et & 4:
        a('s_load_dword s89, s[20:21], s8')
    if et & 32:
        a('L_net:')
    if not kfirst:
        a('s_barrier')
    stamp(1)
    NMIN, NMAX, W2 = 5, 6, 112

    def w2addr():
        a('s_lshl_b32 s8, s46, 13')
        a('s_lshl_b32 s9, s4, 7')
        a('s_add_u32 s8, s8, s9')
        a('s_movk_i32 s9, 0x2000')
        a('v_lshlrev_b32 v14, 10, v6')
        a('v_lshl_add_u32 v14, v7, 4, v14')
        a('v_add_u32 v104, s8, v14')
        for i in range(1, NMAX):
            a(f'v_add_u32 v{104 + i}, s9, v{103 + i}')
        zero(W2 + 4 * NMIN, 4 * ((NMAX + 1) // 2 * 2 - NMIN))

    def w2loads():
        for i in range(NMAX if 'm' not in knock else 0):
            if i >= NMIN:
                a(f's_cmp_le_u32 s47, {i}')
                a('s_cbranch_scc1 L_no6')
            a(f'global_load_dwordx4 v[{W2 + 4 * i}:{W2 + 4 * i + 3}], v{104 + i}, s[32:33] {pol}')
        a('L_no6:')
        if b1late:
            a('s_mov_b64 exec, s[50:51]')
            a('global_load_ushort v60, v61, s[30:31]')
            a('s_mov_b64 exec, -1')

    def HELPERS():
        a('L_01:')
        a('v_lshlrev_b32 v5, 4, v1')
        a('s_cmp_eq_u32 s5, 1')
        a('s_cbranch_scc1 L_mlp0')
        a('v_lshlrev_b32 v6, 17, v3')
        a('v_lshl_add_u32 v6, v2, 4, v6')
        a('s_lshl_b32 s8, s4, 19')
        a('s_lshl_b32 s9, s3, 8')
        a('s_add_u32 s8, s8, s9')
        a('s_movk_i32 s9, 0x2000')
        a('v_add_u32 v40, s8, v6')
        for i in range(1, 16):
            a(f'v_add_u32 v{40 + i}, s9, v{39 + i}')
        a('s_waitcnt lgkmcnt(0)')
        if 'x' not in knock and not xlast:
            a('global_load_dwordx4 v[8:11], v5, s[16:17]')
        for i in range(16 if 'w' not in knock else 0):
            a(f'global_load_dwordx4 v[{104 + 4 * i}:{107 + 4 * i}], v{40 + i}, s[22:23] {pol}')
        if xlast == 1:
            a('global_load_dwordx4 v[8:11], v5, s[16:17]')
        a('s_barrier')
        if xlast == 2:
            a('global_load_dwordx4 v[8:11], v5, s[16:17]')
        a('s_branch L_q')
        a('L_mlp0:')
        a('s_mul_i32 s46, s3, 43')
        a('s_add_u32 s47, s46, 43')
        a('s_lshr_b32 s46, s46, 3')
        a('s_lshr_b32 s47, s47, 3')
        a('s_sub_u32 s47, s47, s46')
        a('v_and_b32 v7, 7, v1')
        a('v_lshrrev_b32 v6, 3, v1')
        a('v_cmp_gt_u32 s[50:51], s47, v7')
        a('v_add_u32 v12, s46, v7')
        a('v_lshlrev_b32 v13, 3, v12')
        a('v_add_lshl_u32 v61, v13, v6, 1')
        a('s_lshl_b32 s8, s4, 6')
        a('v_lshl_add_u32 v14, v6, 3, s8')
        a('s_movk_i32 s9, 2752')
        a('v_mul_lo_u32 v14, v14, s9')
        a('s_movk_i32 s9, 5504')
        a('v_lshl_add_u32 v100, v12, 4, v14')
        for i in range(1, 4):
            a(f'v_add_u32 v{100 + i}, s9, v{99 + i}')
        if not w2late:
            w2addr()
        a('s_waitcnt lgkmcnt(0)')
        if 'x' not in knock and not xlast:
            a('global_load_dwordx4 v[8:11], v5, s[16:17]')
        a('s_mov_b64 exec, s[50:51]')
        for i in range(8 if 'm' not in knock else 0):
            a(f'global_load_dwordx4 v[{64 + 4 * i}:{67 + 4 * i}], v{100 + i // 2}, s[28:29] offset:{(i & 1) * 2752} {w1pol}')
        if 'x' not in knock and not b1late:
            a('global_load_ushort v60, v61, s[30:31]')
        a('s_mov_b64 exec, -1')
        if not w2late:
            w2loads()
        if xlast == 1:
            a('global_load_dwordx4 v[8:11], v5, s[16:17]')
        a('s_barrier')
        if xlast == 2:
            a('global_load_dwordx4 v[8:11], v5, s[16:17]')
        a('s_branch L_mlp')

    KA, VA, KB, VB = 40, 72, 104, 136
    rounds = [('K', 0, 0), ('K', 0, 1), ('V', 0, 0), ('V', 0, 1), ('K', 1, 0), ('K', 1, 1), ('V', 1, 0), ('V', 1, 1)]
    cur = {'K': 0, 'V': 0}

    def addr(r):
        typ, u, t = rounds[r]
        areg = 4 if typ == 'K' else 5
        want = (t << 18) | (u << 19)
        if cur[typ] != want:
            a(f'v_xor_b32 v{areg}, {cur[typ] ^ want}, v{areg}')
            cur[typ] = want

    def loads(r):
        typ, u, t = rounds[r]
        base = ((KA, KB) if typ == 'K' else (VA, VB))[u] + 16 * t
        for i in range(4):
            if typ == 'K':
                a(f'global_load_dwordx4 v[{base + 4 * i}:{base + 4 * i + 3}], v4, s[18:19] offset:{i * 1024} {pol}')
            else:
                a(f'global_load_dwordx4 v[{base + 4 * i}:{base + 4 * i + 3}], v5, s[20:21] offset:{i * 256} {pol}')

    def early(r):
        addr(r)
        a('s_waitcnt vmcnt(4)')
        a('s_memrealtime s[12:13]')
        a('s_waitcnt lgkmcnt(0)')
        a('s_sub_u32 s12, s12, s14')
        a(f's_cmp_gt_u32 s12, {int(ad[0] + ad[1] * (r - 1))}')
        a('s_cselect_b32 s56, 1, 0')
        a(f's_cbranch_scc0 L_e{r}')
        loads(r)
        a(f'L_e{r}:')

    def issue(r):
        if ad and r >= ad[2]:
            a('s_cmp_lg_u32 s56, 0')
            a(f's_cbranch_scc1 L_i{r}')
            a('s_waitcnt vmcnt(0)')
            loads(r)
            a(f'L_i{r}:')
            return
        addr(r)
        if r:
            a('s_waitcnt vmcnt(0)')
        loads(r)

    def sprefetch(r):
        typ, u, t = rounds[r]
        b = 18 if typ == 'K' else 20
        a(f's_xor_b32 s12, s58, {(t << 18) | (u << 19)}')
        a(f's_add_u32 s12, s{b}, s12')
        a(f's_addc_u32 s13, s{b + 1}, 0')
        for i in range(spn):
            a(f's_load_dword s{88 + (i & 7)}, s[12:13], {128 * i}')

    def getq():
        a(f'v_mov_b32 v16, {L_FLAG}')
        a('v_and_b32 v17, 3, v2')
        a('v_lshlrev_b32 v17, 4, v17')
        a('v_lshl_add_u32 v17, v3, 6, v17')
        a('L_qw:')
        a('ds_read_b32 v10, v16')
        a(f'ds_read_b128 v[12:15], v17 offset:{L_Q}')
        a('s_waitcnt lgkmcnt(0)')
        a('v_cmp_eq_u32 vcc, 0, v10')
        poll_tail('L_qw', sleep=2)
        stamp(3)
        for v in range(4):
            for d in range(4):
                a(f'v_mov_b32_dpp v{24 + 4 * v + d}, v{12 + d} quad_perm:[0,1,2,3] row_mask:0xf bank_mask:{1 << v}')

    def qk(u):
        kr = (KA, KB)[u]
        for t in range(2):
            for s in range(4):
                c = '0' if s == 0 else f'v[{12 + 4 * t}:{15 + 4 * t}]'
                r = kr + 16 * t + 4 * s
                a(f'{MF} v[{12 + 4 * t}:{15 + 4 * t}], v[{24 + 4 * s}:{27 + 4 * s}], v[{r}:{r + 3}], {c}')
        for r in range(4):
            for t in range(2):
                qp = f'quad_perm:[{r},{r},{r},{r}]'
                if r == 0:
                    a(f'v_mov_b32_dpp v{t}, v{12 + 4 * t} {qp} {DPPM}')
                else:
                    a(f'v_add_f32_dpp v{t}, v{12 + 4 * t + r}, v{t} {qp} {DPPM}')
        a('v_cndmask_b32 v12, v0, v1, s[54:55]')
        bf16r(12, 12)
        a(f'v_mul_f32 v12, {f2u(128 ** -0.5)}, v12')
        bf16r(12, 12)
        a('v_mul_f32 v12, s46, v12')
        a(f'v_max_f32_dpp v13, v12, v12 row_ror:8 {DPPM}')
        a(f'v_max_f32_dpp v13, v13, v13 row_ror:4 {DPPM}')
        a(f'v_max_f32_dpp v13, v13, v13 {QX1} {DPPM}')
        swapop('v_max_f32', 13, 14, 16)
        swapop('v_max_f32', 13, 14, 32)
        if u == 1:
            a('v_max_f32 v13, v13, v10')
            a('v_sub_f32 v14, v10, v13')
            a('v_exp_f32 v14, v14')
        a('v_sub_f32 v12, v12, v13')
        a('v_exp_f32 v12, v12')
        a('v_mov_b32 v10, v13')
        if u == 1:
            for r in range(4):
                a(f'v_mul_f32 v{20 + r}, v14, v{20 + r}')
        a('v_cvt_pk_bf16_f32 v15, v12, v12')
        a(f'v_add_f32_dpp v13, v12, v12 row_ror:8 {DPPM}')
        extra = [f'v_add_f32_dpp v13, v13, v13 row_ror:4 {DPPM}', f'v_add_f32_dpp v13, v13, v13 {QX1} {DPPM}',
                 'v_mov_b32 v16, v13', 'v_permlane16_swap_b32 v13, v16', 'v_add_f32 v13, v13, v16',
                 'v_mov_b32 v16, v13', 'v_permlane32_swap_b32 v13, v16',
                 'v_add_f32 v11, v13, v16' if u == 0 else 'v_add_f32 v13, v13, v16']
        for i in range(8):
            for d in range(4):
                a(f'v_and_b32_dpp v{kr + 4 * i + d}, v15, v{6 + d} row_newbcast:{4 * (i & 3) + (i >> 2)} {DPPM}')
            a(extra[i])
        if u == 1:
            a('v_fma_f32 v11, v11, v14, v13')
            a('s_lshl_b32 s8, s11, 3')
            a(f's_add_u32 s8, s8, {L_ML}')
            a('v_mov_b32 v12, s8')
            a('ds_write_b64 v12, v[10:11]')
            a('s_lshl_b32 s8, s11, 9')
            a('v_lshlrev_b32 v8, 5, v2')
            a('v_lshl_add_u32 v8, v3, 4, v8')
            a('v_add_u32 v8, s8, v8')

    def pv(u, t, wait=False):
        kr, vr = ((KA, VA), (KB, VB))[u]
        for i in range(4 * t, 4 * t + 4):
            if wait:
                a(f's_waitcnt vmcnt({4 * t + 3 - i})')
            c = '0' if (u == 0 and i == 0) else 'v[20:23]'
            a(f'{MF} v[20:23], v[{kr + 4 * i}:{kr + 4 * i + 3}], v[{vr + 4 * i}:{vr + 4 * i + 3}], {c}')

    def signal(addr):
        a('v_mov_b32 v12, 1')
        a(f'v_mov_b32 v13, {addr}')
        a('s_mov_b64 exec, 1')
        a('ds_add_u32 v13, v12')
        a('s_mov_b64 exec, -1')

    for r in range(8):
        issue(r)
        if 1 <= r <= 4:
            stamp(7 + r)
        if r == 0:
            if ad:
                a('s_memrealtime s[14:15]')
            if kfirst:
                a('s_barrier')
            a('s_branch L_kv1')
            HELPERS()
            a('L_kv1:')
            if prio:
                a('s_setprio 3')
            a('v_lshlrev_b32 v5, 10, v3')
            a('v_lshl_add_u32 v5, v2, 4, v5')
            a('v_add_u32 v5, s8, v5')
            common()
            a('s_load_dword s42, s[40:41], 0')
            masks(6, 10)
            a('s_mov_b32 s54, 0xaaaaaaaa')
            a('s_mov_b32 s55, 0xaaaaaaaa')
            a(f's_mov_b32 s46, {f2u(LOG2E)}')
            zero(24, 16)
        if ad and r + 1 >= ad[2] and r < 7:
            early(r + 1)
        if r == ground:
            signal(L_CN1)
        if r == posA - 1:
            stamp(6)
            if 'c' not in knock:
                if prio == 2:
                    a('s_setprio 1')
                getq()
                qk(0)
                pv(0, 0)
                pv(0, 1)
                if prio == 2:
                    a('s_setprio 3')
            stamp(7)
        if r == 6:
            if 'c' not in knock:
                if prio == 2:
                    a('s_setprio 1')
                qk(1)
                if prio == 2:
                    a('s_setprio 3')
            else:
                a('v_mov_b32 v8, 0')
                a('s_waitcnt lgkmcnt(0)')
            stamp(4)
        if r + 1 in sp:
            sprefetch(r + 1)
        if spw and r == 6:
            signal(L_CN4)
    signal(L_CNT)
    stamp(2)
    a('v_lshl_add_u32 v1, v3, 4, v2')
    a('s_lshl_b32 s8, s3, 3')
    a('s_add_u32 s8, s8, s11')
    a('s_lshl_b32 s8, s8, 10')
    a(f's_add_u32 s8, s8, {OS}')
    a('v_lshl_add_u32 v4, v1, 4, s8')
    a(f's_mul_i32 s8, s11, {OBS}')
    a(f's_add_u32 s8, s8, {L_OB}')
    a('v_lshl_add_u32 v5, v1, 3, s8')
    mktag()
    a('s_and_b32 s48, s3, 7')
    a('s_xor_b32 s48, s48, s4')
    a('s_or_b32 s48, s48, s11')
    a('s_lshr_b32 s8, s3, 3')
    a('s_lshl_b32 s9, s4, 2')
    a('s_add_u32 s9, s9, s8')
    a('s_lshl_b32 s9, s9, 5')
    a('v_and_b32 v6, 7, v1')
    a('v_lshl_add_u32 v24, v6, 2, s9')
    a('v_lshrrev_b32 v7, 3, v1')
    a('v_lshlrev_b32 v7, 9, v7')
    a('v_lshl_add_u32 v7, v6, 4, v7')
    a('s_lshl_b32 s8, s8, 7')
    a('s_lshl_b32 s9, s4, 14')
    a('s_add_u32 s8, s8, s9')
    a(f's_add_u32 s8, s8, {SS + 4096}')
    a('v_add_u32 v25, s8, v7')
    a('v_add_u32 v26, 0x2000, v25')
    a(f'v_add_u32 v27, {US - SS}, v25')
    a(f'v_add_u32 v28, {US - SS}, v26')
    a('s_mov_b32 s54, 0')
    a('s_mov_b32 s55, -1')
    if ad:
        a('s_waitcnt vmcnt(4)')
    pv(1, 0)
    pv(1, 1, wait=True)
    stamp(5)
    a('s_mov_b32 exec_hi, 0')
    a(f'ds_write_b128 v8, v[20:23] offset:{L_OP}')
    a('s_mov_b32 exec_hi, -1')
    a('s_cmp_lg_u32 s48, 0')
    if not preb1:
        a('s_waitcnt lgkmcnt(0)')
        a('s_barrier')
        if b2:
            a('s_barrier')
    a('s_cbranch_scc1 L_nox')
    if 'f' in knock:
        a('s_branch L_nox')
    a('global_load_dword v29, v24, s[16:17]')
    a('global_load_dword v30, v24, s[34:35]')
    a('global_load_dword v31, v24, s[36:37]')
    if uearly:
        for ln in glist(64, 27, 28):
            a(ln)
        if swarm:
            for ln in glist(80, 25, 26):
                a(ln)
    a('L_nox:')
    if prio:
        a('s_setprio 0')
    if preb1:
        a('s_waitcnt lgkmcnt(0)')
        a('s_barrier')
        if b2:
            a('s_barrier')
    if 't' in knock:
        a('s_branch L_end')
    if selfb:
        a('s_cmp_eq_u32 s11, s4')
        a('s_cbranch_scc1 L_pb_done')
    a('s_mov_b32 exec_hi, 1')
    if delb:
        a(f's_sleep {delb}')
    for k in range(PB):
        a(f'global_load_dwordx4 v[{40 + 4 * k}:{43 + 4 * k}], v4, s[40:41] {hlb}')
        if k < PB - 1 and gapb:
            a(f's_sleep {gapb}')
    a('L_pb:')
    for k in range(PB):
        a(f's_waitcnt vmcnt({PB - 1})')
        tagcheck([41 + 4 * k, 43 + 4 * k], 12)
        a(f's_cbranch_vccz L_pb_ok{k}')
        a(f'global_load_dwordx4 v[{40 + 4 * k}:{43 + 4 * k}], v4, s[40:41] {hlb}')
    a('s_sub_u32 s7, s7, 1')
    a('s_cbranch_scc0 L_pb')
    a('s_branch L_end')
    for k in range(PB):
        a(f'L_pb_ok{k}:')
        a(f'ds_write2_b32 v5, v{40 + 4 * k}, v{42 + 4 * k} offset1:1')
        if k < PB - 1:
            a('s_branch L_pb_done')
    a('L_pb_done:')
    stamp(11)
    a('s_cmp_lg_u32 s48, 0')
    a('s_waitcnt lgkmcnt(0)')
    a('s_barrier')
    if stamps and not amp and b4 == 1:
        a('s_cbranch_scc0 L_fin')
        a('s_barrier')
        a('s_branch L_end')
        a('L_fin:')
    else:
        a('s_cbranch_scc1 L_end')
    if 'S' in knock or 'P' in knock:
        a('s_branch L_end')
    a('s_mov_b32 exec_hi, -1')
    SR = 80

    def xb():
        a('v_lshlrev_b32 v32, 16, v30'); a('v_and_b32 v33, s45, v30')
        a('v_lshlrev_b32 v34, 16, v29'); a('v_and_b32 v35, s45, v29')
        a('v_cndmask_b32 v32, v32, v33, s[54:55]')
        a('v_cndmask_b32 v34, v34, v35, s[54:55]')
    if uearly:
        for ln in glist(SR, 25, 26):
            a(ln)
        a('s_waitcnt vmcnt(4)')
        a('s_branch L_pu1')
        a('L_pu:')
        for ln in glist(64, 27, 28):
            a(ln)
        a('s_waitcnt vmcnt(0)')
        a('L_pu1:')
        if 'u' in knock:
            a('s_branch L_pu_ok')
        tagcheck([65 + 2 * k for k in range(8)], 12)
        poll_tail('L_pu', sleep=0)
        xb()
    else:
        a('L_pu:')
        for ln in glist(64, 27, 28):
            a(ln)
        a('s_waitcnt vmcnt(4)')
        xb()
        a('s_waitcnt vmcnt(0)')
        tagcheck([65 + 2 * k for k in range(8)], 12)
        poll_tail('L_pu', sleep=0)
    def g1():
        gsum1(64, 12)
        gsum2(12)
        a('v_add_f32 v32, v32, v12')
        bf16r(32, 32)

    def g2():
        a(f'v_mul_f32 v33, {f2u(-LOG2E)}, v32')
        a('v_exp_f32 v33, v33')
        a('v_add_f32 v33, 1.0, v33')
        a('v_rcp_f32 v33, v33')
        a('v_mul_f32 v32, v32, v33')
        bf16r(32, 32)
        a('v_lshrrev_b32 v33, 4, v1')
        a('v_and_b32 v33, 2, v33')
        a('v_add_u32 v24, v24, v33')
        a('v_mov_b32 v35, 0')
        a('v_mov_b32 v36, s6')
    if b4:
        g1()
        g2()
        if b4 == 1:
            a('s_barrier')
        for k in range(1, PC):
            for ln in glist(SR + 16 * k, 25, 26):
                a(ln)
            if k < PC - 1 and gapc:
                a(f's_sleep {gapc}')
    else:
        for k in range(PC):
            if not (uearly and k == 0):
                for ln in glist(SR + 16 * k, 25, 26):
                    a(ln)
            kk = k - (1 if uearly else 0)
            if kk == 0:
                g1()
            elif kk == 1:
                g2()
            elif kk > 1 and k < PC - 1 and gapc:
                a(f's_sleep {gapc}')
    stamp(12)
    a('L_ps:')
    for k in range(PC):
        r = SR + 16 * k
        a(f's_waitcnt vmcnt({4 * (PC - 1)})')
        tagcheck([r + 1 + 2 * j for j in range(8)], 16)
        gsum1(r, 12)
        a('s_cbranch_vccz L_ps_ok')
        for ln in glist(r, 25, 26):
            a(ln)
    a('s_sub_u32 s7, s7, 1')
    a('s_cbranch_scc0 L_ps')
    a('s_branch L_end')
    a('L_ps_ok:')
    stamp(10)
    gsum2(12)
    a('v_mul_f32 v12, v12, v32')
    bf16r(12, 12)
    a('v_add_f32 v12, v12, v34')
    a('v_cvt_pk_bf16_f32 v12, v12, v12')
    a('s_mov_b32 exec_lo, 0xff')
    a('s_mov_b32 exec_hi, 0xff')
    a(f'global_store_short v24, v12, s[36:37] {ost}')
    a('s_cmp_lg_u32 s10, 0')
    a('s_cbranch_scc1 L_end')
    a('s_mov_b64 exec, 1')
    a(f'global_store_dword v35, v36, s[40:41] {eps}')
    if amp:
        stamp(13)
        a('s_waitcnt lgkmcnt(0)')
        a(f's_sub_u32 s8, s{60 + 2 * ampst}, s60')
        a(f's_mul_i32 s8, s8, {amp}')
        a('s_min_u32 s8, s8, 100000')
        a('L_amp:')
        a('s_memrealtime s[12:13]')
        a('s_waitcnt lgkmcnt(0)')
        a('s_sub_u32 s9, s12, s86')
        a('s_cmp_lt_u32 s9, s8')
        a('s_cbranch_scc1 L_amp')
        a('s_endpgm')
    a('s_branch L_end')

    a('L_q:')
    stamp(1)
    common()
    a('s_load_dword s42, s[40:41], 0')
    a('v_and_b32 v4, 1, v3')
    a('v_lshlrev_b32 v4, 3, v4')
    a('v_lshl_add_u32 v4, v2, 4, v4')
    a('v_lshrrev_b32 v6, 1, v3')
    a('v_lshl_add_u32 v4, v6, 2, v4')
    masks(28, 32)
    a('s_waitcnt vmcnt(%d)' % (0 if xlast else 16))
    stamp(2)
    layernorm()
    a(f'ds_write_b128 v5, v[8:11] offset:{L_XN}')
    a('s_lshl_b32 s8, s4, 7')
    a('v_lshl_add_u32 v6, v1, 1, s8')
    a(f'ds_read_u16 v12, v6 offset:{L_XN}')
    a('s_waitcnt lgkmcnt(0)')
    mktag()
    tagA()
    a('v_lshl_or_b32 v12, v12, 16, v12')
    for i in range(17):
        if i < 16:
            for d in range(4):
                a(f'v_and_b32_dpp v{40 + 4 * i + d}, v12, v{28 + d} row_newbcast:{i} {DPPM}')
        if i:
            j = i - 1
            a(f's_waitcnt vmcnt({15 - j})')
            c = '0' if j == 0 else 'v[20:23]'
            a(f'{MF} v[20:23], v[{40 + 4 * j}:{43 + 4 * j}], v[{104 + 4 * j}:{107 + 4 * j}], {c}')
    a('s_lshl_b32 s8, s10, 10')
    a(f's_add_u32 s8, s8, {QS}')
    a('v_add_u32 v7, s8, v5')
    a('v_mov_b32 v25, s49')
    a('v_mov_b32 v27, s49')
    a('s_lshl_b32 s8, s3, 13')
    a(f's_add_u32 s8, s8, {QS + 4096}')
    a('v_add_u32 v6, s8, v5')
    a('v_permlane32_swap_b32 v20, v22')
    a('v_permlane32_swap_b32 v21, v23')
    a('v_mov_b32 v24, v20')
    a('v_mov_b32 v26, v21')
    exchange('L_pq', 'global_store_dwordx4 v7, v[24:27], s[40:41]',
             [f'global_load_dwordx4 v[{28 + 4 * p}:{31 + 4 * p}], v6, s[40:41] offset:{p * 1024 - 4096}' for p in range(8)],
             [29 + 2 * k for k in range(16)], 60)
    for k in (0, 2):
        a(f'v_add_f32 v{28 + k}, v{28 + k}, v{32 + k}'); a(f'v_add_f32 v{36 + k}, v{36 + k}, v{40 + k}')
        a(f'v_add_f32 v{44 + k}, v{44 + k}, v{48 + k}'); a(f'v_add_f32 v{52 + k}, v{52 + k}, v{56 + k}')
        a(f'v_add_f32 v{28 + k}, v{28 + k}, v{36 + k}'); a(f'v_add_f32 v{44 + k}, v{44 + k}, v{52 + k}')
        a(f'v_add_f32 v{28 + k}, v{28 + k}, v{44 + k}')
    a('v_cvt_pk_bf16_f32 v28, v28, v30')
    a(f'ds_write_b32 v4, v28 offset:{L_Q}')
    a(f'v_mov_b32 v5, {L_FLAG}')
    a('v_mov_b32 v7, 1')
    a('s_waitcnt lgkmcnt(0)')
    a('ds_write_b32 v5, v7')
    stamp(4)
    a('s_branch L_service')

    a('L_mlp:')
    stamp(1)
    common()
    a('s_load_dword s42, s[40:41], 0')
    a('s_mov_b32 s43, 0x05040100')
    a('s_mov_b32 s44, 0x07060302')
    a('s_mov_b32 s52, 0xff00ff00')
    a('s_mov_b32 s53, 0xff00ff00')
    a(f's_waitcnt vmcnt({0 if xlast else 9 - b1late + (0 if w2late else NMIN)})')
    stamp(2)
    layernorm()
    layernorm()
    a(f'ds_write_b128 v5, v[8:11] offset:{L_YN}')
    a('s_lshl_b32 s8, s4, 7')
    a('v_lshl_add_u32 v6, v6, 4, s8')
    a(f'ds_read_b128 v[28:31], v6 offset:{L_YN}')
    zero(20, 8)
    a('s_waitcnt lgkmcnt(0)')
    mktag()
    tagA()
    a(f's_waitcnt vmcnt({(1 - b1late if not xlast else 0) if w2late else NMIN})')
    for t in range(4):
        pair_gemv(64 + 8 * t, 68 + 8 * t, 28 + t, 20, 36 + 8 * (t & 1))
    halve3(20)
    a('s_lshl_b32 s8, s3, 3')
    a('s_add_u32 s8, s8, s4')
    a('s_lshl_b32 s8, s8, 9')
    a(f's_add_u32 s8, s8, {HS}')
    a('v_lshl_add_u32 v4, v1, 3, s8')
    a('v_mov_b32 v26, v20')
    a('v_mov_b32 v27, s49')
    a('s_lshl_b32 s8, s3, 12')
    a(f's_add_u32 s8, s8, {HS}')
    a('v_lshl_add_u32 v6, v1, 3, s8')
    exchange('L_ph', 'global_store_dwordx2 v4, v[26:27], s[40:41]', after=(lambda: (a('v_lshrrev_b32 v6, 3, v1'), w2addr(), w2loads(), a('s_lshl_b32 s8, s3, 12'), a(f's_add_u32 s8, s8, {HS}'), a('v_lshl_add_u32 v6, v1, 3, s8'))) if w2late else None, loads=
             [f'global_load_dwordx2 v[{8 + 2 * p}:{9 + 2 * p}], v6, s[40:41] offset:{p * 512}' for p in range(8)],
             tags=[9 + 2 * k for k in range(8)], t=24)
    a('v_add_f32 v8, v8, v10'); a('v_add_f32 v12, v12, v14'); a('v_add_f32 v16, v16, v18'); a('v_add_f32 v20, v20, v22')
    a('v_add_f32 v8, v8, v12'); a('v_add_f32 v16, v16, v20'); a('v_add_f32 v8, v8, v16')
    bf16r(8, 8)
    a('v_lshlrev_b32 v60, 16, v60')
    a('v_add_f32 v8, v8, v60')
    bf16r(8, 8)
    c0 = -2.0 * 0.7978845608028654 * LOG2E
    a('v_mul_f32 v9, v8, v8')
    a(f'v_mov_b32 v10, {f2u(c0)}')
    a(f'v_fmamk_f32 v9, v9, {f2u(c0 * 0.044715)}, v10')
    a('v_mul_f32 v9, v9, v8')
    a('v_exp_f32 v9, v9')
    a('v_add_f32 v9, 1.0, v9')
    a('v_rcp_f32 v9, v9')
    a('v_mul_f32 v8, v8, v9')
    a('v_cndmask_b32 v8, 0, v8, s[50:51]')
    NP = (NMAX + 1) // 2
    for i in range(2 * NP):
        a(f'ds_swizzle_b32 v{10 + i}, v8 offset:{(i << 5) | 0x18}')
    zero(20, 8)
    a('s_waitcnt lgkmcnt(0)')
    for t in range(NP):
        a(f'v_cvt_pk_bf16_f32 v{10 + 2 * t}, v{10 + 2 * t}, v{11 + 2 * t}')
    for t in range(NP):
        pair_gemv(W2 + 8 * t, W2 + 4 + 8 * t, 10 + 2 * t, 20, 28)
    halve3(20)
    a('v_lshlrev_b32 v6, 6, v7')
    a('v_and_or_b32 v6, v1, 56, v6')
    a('s_lshl_b32 s8, s4, 5')
    a('s_add_u32 s8, s8, s3')
    a('s_lshl_b32 s8, s8, 9')
    a(f's_add_u32 s8, s8, {US}')
    a('v_add_u32 v100, s8, v6')
    a('v_mov_b32 v102, v20')
    a('v_mov_b32 v103, s6')
    UST = f'global_store_dwordx2 v100, v[102:103], s[40:41] {hs}'
    if uat == 'now' and 'u' not in knock:
        a(UST)
    stamp(4)
    a('s_branch L_service')

    a('L_h23:')
    a('s_and_b32 s3, s2, 7')
    a('s_bfe_u32 s9, s2, 0x20003')
    a('s_lshl2_add_u32 s3, s3, s9')
    a('s_lshr_b32 s4, s2, 5')
    a('v_and_b32 v1, 63, v0')
    a('v_and_b32 v2, 15, v0')
    a('v_lshrrev_b32 v3, 4, v1')
    common()
    a('v_mov_b32 v100, 0')
    a('s_lshl_b32 s8, s3, 23')
    a('s_add_u32 s8, s8, 0x700000')
    a('s_lshl_b32 s9, s3, 17')
    a('s_load_dword s42, s[40:41], 0')
    if stouch == 1:
        a('s_load_dword s88, s[20:21], s8')
        a('s_load_dword s89, s[24:25], s9')
        a('s_load_dword s90, s[34:35], 0')
        a('s_load_dword s91, s[36:37], 0')
    elif stouch:
        a('s_and_b32 s12, s3, 7')
        a('s_xor_b32 s12, s12, s4')
        a('s_xor_b32 s13, s5, 3')
        a('s_or_b32 s12, s12, s13')
        a('s_cbranch_scc1 L_nt')
        if stouch & 2:
            a('s_load_dword s88, s[20:21], s8')
            a('s_load_dword s89, s[24:25], s9')
        if stouch & 4:
            a('s_load_dword s90, s[34:35], 0')
            a('s_load_dword s91, s[36:37], 0')
        if cpf:
            a('s_getpc_b64 s[12:13]')
            a('L_pc:')
            a('s_sub_u32 s12, s12, L_pc-L_pb_done')
            a('s_subb_u32 s13, s13, 0')
            for i in range(9):
                a(f's_load_dword s{92 + (i & 3)}, s[12:13], {128 * i}')
        a('L_nt:')
    stamp(1)
    a('s_waitcnt lgkmcnt(0)')
    mktag()

    a('L_service:')
    a('v_and_b32 v6, 7, v1')
    a('v_lshrrev_b32 v5, 3, v1')
    a('v_and_b32 v7, 2, v5')
    a('v_xor_b32 v7, v7, v6')
    a('v_lshlrev_b32 v5, 10, v5')
    a('v_lshl_add_u32 v5, v7, 4, v5')
    a('s_lshl_b32 s8, s3, 17')
    a('s_lshl_b32 s9, s5, 15')
    a('s_add_u32 s8, s8, s9')
    a('s_lshl_b32 s9, s4, 7')
    a('s_add_u32 s8, s8, s9')
    a('v_add_u32 v8, s8, v5')
    a('v_xor_b32 v9, 0x2040, v8')
    a('v_add_u32 v10, 0x4000, v8')
    a('v_add_u32 v11, 0x4000, v9')
    a('s_lshl_b32 s8, s5, 12')
    a('v_lshl_add_u32 v12, v1, 4, s8')
    a('v_lshrrev_b32 v13, 2, v2')
    a('v_lshl_add_u32 v13, v3, 3, v13')
    a('v_lshlrev_b32 v13, 7, v13')
    a('v_and_b32 v14, 3, v2')
    a('v_lshl_add_u32 v13, v14, 3, v13')
    a('v_bfe_u32 v14, v1, 3, 2')
    a('v_xor_b32 v14, s5, v14')
    a('v_lshl_add_u32 v13, v14, 5, v13')
    a('v_lshlrev_b32 v14, 3, v6')
    a('v_lshlrev_b32 v15, 3, v1')
    a('s_lshl_b32 s8, s10, 10')
    a(f's_add_u32 s8, s8, {OS}')
    a('v_add_u32 v16, s8, v15')
    a(f'v_mul_u32_u24 v61, {OBS}, v6')
    a(f'v_mov_b32 v60, {L_CN3}')
    a('v_mov_b32 v17, 1')
    a('v_and_b32 v63, 8, v1')
    a('v_lshl_add_u32 v62, v63, 4, v61')
    a('v_lshl_add_u32 v62, v3, 4, v62')
    a('s_lshl_b32 s8, s4, 5')
    a('s_add_u32 s8, s8, s3')
    a('s_lshl_b32 s8, s8, 9')
    a('s_lshl_b32 s9, s5, 7')
    a('s_add_u32 s8, s8, s9')
    a(f's_add_u32 s8, s8, {SS}')
    a('v_lshl_add_u32 v19, v2, 3, s8')
    a('s_mov_b32 s54, 0')
    a('s_mov_b32 s55, -1')
    a('v_mov_b32 v21, s6')
    a('v_mov_b32 v23, s6')
    a('v_mov_b32 v25, s6')
    a('v_mov_b32 v27, s6')
    if pw & 4:
        ldswait('L_cw0', L_FLAG, 1, 30, 4)
    if pw & 1:
        a('global_load_dword v110, v19, s[40:41]')
    if pw & 2:
        a('global_load_dwordx2 v[112:113], v16, s[40:41]')
    if spw:
        if spw > 0:
            ldswait('L_cw5', L_CN4, spw, 30, 4)
        else:
            ldswait('L_cw5', L_CNT, -spw, 30, 4)
        a('s_lshl_b32 s8, s3, 17')
        a('s_lshl_b32 s9, s5, 15')
        a('s_add_u32 s8, s8, s9')
        a('s_lshl_b32 s9, s4, 7')
        a('s_add_u32 s8, s8, s9')
        a('s_add_u32 s12, s24, s8')
        a('s_addc_u32 s13, s25, 0')
        for i in range(32):
            a(f's_load_dword s{88 + (i & 7)}, s[12:13], {1024 * i}')
    if 'l' not in knock:
        ldswait('L_cw', L_CNT, 8, 30, 4)
    if dma:
        a('s_lshl_b32 s8, s5, 12')
        for i in range(4 if 'o' not in knock else 0):
            a(f's_add_u32 m0, s8, {L_W + 1024 * i}')
            a('s_nop 0')
            a(f'global_load_lds_dwordx4 v{8 + i}, s[24:25] {pol}')
    else:
        for i in range(4):
            a(f'global_load_dwordx4 v[{64 + 4 * i}:{67 + 4 * i}], v{8 + i}, s[24:25] {pol}')
    stamp(6)
    a('s_cmp_lg_u32 s5, 0')
    a('s_cbranch_scc1 L_h123')
    a(f'ds_read_b64 v[28:29], v14 offset:{L_ML}')
    a('s_waitcnt lgkmcnt(0)')
    a(f'v_max_f32_dpp v20, v28, v28 row_ror:4 {DPPM}')
    a(f'v_max_f32_dpp v20, v20, v20 row_ror:2 {DPPM}')
    a(f'v_max_f32_dpp v20, v20, v20 row_ror:1 {DPPM}')
    a('v_sub_f32 v28, v28, v20')
    a('v_exp_f32 v28, v28')
    a('v_mul_f32 v22, v28, v29')
    for r in (4, 2, 1):
        a(f'v_add_f32_dpp v22, v22, v22 row_ror:{r} {DPPM}')
    if selfb:
        a(f's_mul_i32 s8, s4, {OBS}')
        a(f's_add_u32 s8, s8, {L_OB}')
        a('v_lshl_add_u32 v18, v1, 2, s8')
    a('s_mov_b64 exec, 1')
    if selfb:
        a('ds_write2_b32 v18, v20, v22 offset0:64 offset1:65')
    a('s_cmp_lg_u32 s48, 0')
    a('s_cbranch_scc1 L_mlfar')
    a('global_store_dwordx4 v16, v[20:23], s[40:41] offset:512')
    a('s_branch L_mld')
    a('L_mlfar:')
    a(f'global_store_dwordx4 v16, v[20:23], s[40:41] offset:512 {hs}')
    a('L_mld:')
    a('s_mov_b64 exec, -1')
    a('s_barrier')
    stamp(7)
    for n in range(0, 8, 2):
        a(f'ds_read2st64_b64 v[{32 + 2 * n}:{35 + 2 * n}], v15 offset0:{n} offset1:{n + 1}')
    for n in range(8):
        if n % 2 == 0:
            a(f's_waitcnt lgkmcnt({3 - n // 2})')
        op = 'v_mul_f32_dpp' if n < 2 else 'v_fmac_f32_dpp'
        a(f'{op} v{(24, 48)[n & 1]}, v28, v{32 + 2 * n} row_newbcast:{n} {DPPM}')
        a(f'{op} v{(30, 49)[n & 1]}, v28, v{33 + 2 * n} row_newbcast:{n} {DPPM}')
    a('v_add_f32 v24, v24, v48')
    a('v_add_f32 v30, v30, v49')
    a('v_cvt_pk_bf16_f32 v24, v24, v30')
    a('s_cbranch_scc1 L_far')
    a('global_store_dwordx2 v16, v[24:25], s[40:41]')
    a('L_pubd:')
    stamp(8)
    if b2:
        a('s_barrier')
    if selfb:
        a('ds_write_b32 v18, v24')
        a('s_waitcnt lgkmcnt(0)')
    a('s_waitcnt vmcnt(2)')
    a('s_branch L_wo')
    a('L_far:')
    a(f'global_store_dwordx2 v16, v[24:25], s[40:41] {hs}')
    a('s_branch L_pubd')
    a('L_h123:')
    a('s_cmp_lg_u32 s5, 1')
    if uat == 'cnt':
        a('s_cbranch_scc1 L_h23b')
        a(UST)
        a('L_h23b:')
    a('s_barrier')
    stamp(7)
    if b2:
        a('s_barrier')
    if uat == 'B1':
        a('s_cbranch_scc1 L_h23b')
        a(UST)
        a('s_waitcnt vmcnt(1)')
        a('s_branch L_wo')
        a('L_h23b:')
    a('s_waitcnt vmcnt(0)')
    a('L_wo:')
    if 't' in knock:
        a('s_branch L_end')
    if not dma:
        for i in range(4):
            a(f'ds_write_b128 v12, v[{64 + 4 * i}:{67 + 4 * i}] offset:{L_W + 1024 * i}')
        a('s_waitcnt lgkmcnt(0)')

    def trreads(ss):
        for s in ss:
            for hh in range(2):
                r = 64 + 4 * s + 2 * hh
                a(f'ds_read_b64_tr_b16 v[{r}:{r + 1}], v13 offset:{L_W + 4096 * s + 512 * hh}')
    if not merge:
        a('s_mov_b64 exec, 1')
        a('ds_add_u32 v60, v17')
        a('s_mov_b64 exec, -1')
        a('L_cw3:')
        a('ds_read_b32 v31, v60')
        a('s_waitcnt lgkmcnt(0)')
        a('v_cmp_gt_u32 vcc, 4, v31')
        poll_tail('L_cw3', sleep=0)
        trreads(range(4))
    stamp(9)
    a('s_barrier')
    stamp(10)
    a(f'ds_read_b64 v[28:29], v61 offset:{L_OB + 256}')
    a(f'ds_read_b128 v[32:35], v62 offset:{L_OB}')
    if merge:
        trreads((0, 2))
    a(f'ds_read_b128 v[40:43], v62 offset:{L_OB + 64}')
    if merge:
        trreads((1, 3))
        a('s_waitcnt lgkmcnt(10)')
        a(f'v_max_f32_dpp v48, v28, v28 row_ror:4 {DPPM}')
        a(f'v_max_f32_dpp v48, v48, v48 row_ror:2 {DPPM}')
        a(f'v_max_f32_dpp v48, v48, v48 row_ror:1 {DPPM}')
        a('v_sub_f32 v28, v28, v48')
        a('v_exp_f32 v28, v28')
        a('s_waitcnt lgkmcnt(7)')
        a(f'{MF} v[52:55], v[32:35], v[64:67], 0')
        a('v_mul_f32 v30, v28, v29')
        a('s_waitcnt lgkmcnt(5)')
        a(f'{MF} v[56:59], v[32:35], v[72:75], 0')
        a(f'v_add_f32_dpp v30, v30, v30 row_ror:4 {DPPM}')
        a('s_waitcnt lgkmcnt(2)')
        a(f'{MF} v[52:55], v[40:43], v[68:71], v[52:55]')
        a(f'v_add_f32_dpp v30, v30, v30 row_ror:2 {DPPM}')
        a('s_waitcnt lgkmcnt(0)')
        a(f'{MF} v[56:59], v[40:43], v[76:79], v[56:59]')
        a(f'v_add_f32_dpp v30, v30, v30 row_ror:1 {DPPM}')
    else:
        a('s_waitcnt lgkmcnt(1)')
        a(f'v_max_f32_dpp v48, v28, v28 row_ror:4 {DPPM}')
        a(f'{MF} v[52:55], v[32:35], v[64:67], 0')
        a(f'{MF} v[56:59], v[32:35], v[72:75], 0')
        a('s_waitcnt lgkmcnt(0)')
        a(f'v_max_f32_dpp v48, v48, v48 row_ror:2 {DPPM}')
        a(f'{MF} v[52:55], v[40:43], v[68:71], v[52:55]')
        a(f'{MF} v[56:59], v[40:43], v[76:79], v[56:59]')
        a(f'v_max_f32_dpp v48, v48, v48 row_ror:1 {DPPM}')
        a('v_sub_f32 v28, v28, v48')
        a('v_exp_f32 v28, v28')
        a('v_mul_f32 v30, v28, v29')
        for r in (4, 2, 1):
            a(f'v_add_f32_dpp v30, v30, v30 row_ror:{r} {DPPM}')
    a('v_mov_b32_dpp v28, v28 row_ror:4 row_mask:0xa bank_mask:0xf')
    a('v_rcp_f32 v30, v30')
    for r in range(4):
        a(f'v_cndmask_b32 v{52 + r}, v{52 + r}, v{56 + r}, s[54:55]')
    a(f'v_mul_f32_dpp v26, v28, v52 row_newbcast:0 {DPPM}')
    a(f'v_mul_f32_dpp v48, v28, v53 row_newbcast:1 {DPPM}')
    a(f'v_fmac_f32_dpp v26, v28, v54 row_newbcast:2 {DPPM}')
    a(f'v_fmac_f32_dpp v48, v28, v55 row_newbcast:3 {DPPM}')
    a('v_add_f32 v26, v26, v48')
    a('v_mul_f32 v26, v26, v30')
    swapop('v_add_f32', 26, 48, 16)
    swapop('v_add_f32', 26, 48, 32)
    a('s_mov_b64 exec, 0xffff')
    if 'S' not in knock:
        a(f'global_store_dwordx2 v19, v[26:27], s[40:41] {hsc}')
    stamp(11)
    if b4 == 1:
        a('s_barrier')

    a('L_end:')
    if stamps and not amp:
        a('s_cmp_ge_u32 s2, 256')
        a('s_cbranch_scc1 L_end3')
        stamp(13)
        a('s_waitcnt lgkmcnt(0)')
        a('s_sleep 100')
        a('s_mov_b64 exec, 1')
        a(f's_mul_i32 s8, s10, {NW}')
        a('s_add_u32 s8, s8, s5')
        a(f's_mul_i32 s8, s8, {8 * NST}')
        a(f's_add_u32 s8, s8, {STAMP}')
        a('s_waitcnt vmcnt(0)')
        a('v_mov_b32 v1, s8')
        for k in range(NST):
            a(f'v_mov_b32 v2, s{60 + 2 * k}'); a(f'v_mov_b32 v3, s{61 + 2 * k}')
            a(f'global_store_dwordx2 v1, v[2:3], s[40:41] offset:{8 * k}')
        a('L_end3:')
    a('s_endpgm')

    out = HEADER
    out += f'; @launch grid=(256,1,1) block=({NW * 64},1,1) lds={LDS_BYTES}\n'
    out += DOC
    out += '.amdgcn_target "amdgcn-amd-amdhsa--gfx950"\n.text\n'
    out += f'.globl {NAME}_kernel\n.p2align 8\n.type {NAME}_kernel,@function\n{NAME}_kernel:\n'
    if stamps:
        out += ''.join(f'    s_mov_b64 s[{60 + 2 * k}:{61 + 2 * k}], 0\n' for k in range(NST))
    out += a.text()
    out += f'''.section .rodata,"a"
.p2align 6
.amdhsa_kernel {NAME}_kernel
  .amdhsa_next_free_vgpr 168
  .amdhsa_next_free_sgpr 96
  .amdhsa_accum_offset 168
  .amdhsa_group_segment_fixed_size 0
  .amdhsa_kernarg_size 104
  .amdhsa_user_sgpr_count 2
  .amdhsa_user_sgpr_kernarg_segment_ptr 1
  .amdhsa_system_sgpr_workgroup_id_x 1
  .amdhsa_float_denorm_mode_32 3
.end_amdhsa_kernel
'''
    return out


if __name__ == '__main__':
    V = eval(sys.argv[1])
    for k, v in V.items():
        open(f'exp/{k}.s', 'w').write(gen(**v))
```

```python
import sys, struct
sys.path.insert(0, 'exp')
from asmlib import Asm

NAME = 'recurrent_scan__sliding_block_cached__mixer_channel_mlp__decode'
HEADER = open('cdna_kernels/' + NAME + '.s.ref').read().split('; Override launch geometry')[0]


DOC = '''; ---------------------------------------------------------------------------------------------
; Hand-offs go through d_ws as 8-byte {data, tag} granules; tag = f(epoch word found in d_ws), the
; ---------------------------------------------------------------------------------------------
'''


def f2u(x):
    return '0x%08x' % struct.unpack('<I', struct.pack('<f', x))[0]


QS, HS, OS, SS, US = 0x10000, 0x50000, 0x80000, 0x100000, 0x120000
S2, CH = 0x140000, 0x8000
STAMP = 0x20000000
L_OP, L_ML, L_FLAG, L_CNT, L_CN1, L_CN3 = 0x0, 0x1000, 0x1040, 0x1044, 0x1048, 0x104c
L_CN4 = 0x1050
L_Q, L_XN, L_YN, L_W = 0x1100, 0x1200, 0x1600, 0x2000
L_OB, OBS = 0x6000, 272
LDS_BYTES = 0x6900
LOG2E = 1.4426950408889634
DPPM = 'row_mask:0xf bank_mask:0xf'
SPIN = 1 << 20
NST = 14
NW = 12
MF = 'v_mfma_f32_16x16x32_bf16'
QX1 = 'quad_perm:[1,0,3,2]'


def gen(stamps=False, pol='nt', amp=0, ampst=13, posA=6, PB=1, PC=4, gapb=0, gapc=0, stouch=6, kfirst=0,
        w1pol='nt', ground=2, gcnt=8, fast=1, knock='', uat='now', hsw=4, ad=None, par=None, dma=1, merge=0, delb=0, hsc='sc1', hlc='sc1', hlb='sc1', b2=1, selfb=1, uearly=1, swarm=1, preb1=1, pw=0, sp=(), spn=32, spw=0, big=0, cpf=1, w2late=1, et=35, b1late=1, xlast=0, epf=0, epw=3, lazy=3, eps='', ost='nt', b4=1, prio=0, etw=3, fin=4, slay=4, S2=S2, meas=0, numa=5, hom=0, race=6, wsp=None, slw=4, wb=0):
    a = Asm()
    hs, hl = 'sc1', 'sc1'

    def stamp(k):
        if stamps:
            a(f's_memrealtime s[{60 + 2 * k}:{61 + 2 * k}]')

    def swapop(op, v, t, which):
        a(f'v_mov_b32 v{t}, v{v}')
        a(f'v_permlane{which}_swap_b32 v{v}, v{t}')
        a(f'{op} v{v}, v{v}, v{t}')

    def allreduce(op, v, t):
        for r in (8, 4, 2, 1):
            a(f'{op}_dpp v{v}, v{v}, v{v} row_ror:{r} {DPPM}')
        swapop(op, v, t, 16)
        swapop(op, v, t, 32)

    def halve3(b):
        for k in range(4):
            a(f'v_permlane32_swap_b32 v{b + k}, v{b + k + 4}')
        for k in range(4):
            a(f'v_add_f32 v{b + k}, v{b + k}, v{b + k + 4}')
        for k in range(2):
            a(f'v_permlane16_swap_b32 v{b + k}, v{b + k + 2}')
        for k in range(2):
            a(f'v_add_f32 v{b + k}, v{b + k}, v{b + k + 2}')
        a(f'v_add_f32_dpp v{b}, v{b}, v{b} row_ror:8 {DPPM}')
        a(f'v_add_f32_dpp v{b + 1}, v{b + 1}, v{b + 1} row_ror:8 {DPPM}')
        a(f'v_cndmask_b32 v{b}, v{b}, v{b + 1}, s[52:53]')

    def bf16r(dst, src):
        a(f'v_cvt_pk_bf16_f32 v{dst}, v{src}, v{src}')
        a(f'v_and_b32 v{dst}, s45, v{dst}')

    def layernorm():
        for d in range(4):
            a(f'v_lshlrev_b32 v{12 + 2 * d}, 16, v{8 + d}')
            a(f'v_and_b32 v{13 + 2 * d}, s45, v{8 + d}')
        a('v_add_f32 v20, v12, v13'); a('v_add_f32 v21, v14, v15'); a('v_add_f32 v22, v16, v17'); a('v_add_f32 v23, v18, v19')
        a('v_add_f32 v20, v20, v21'); a('v_add_f32 v22, v22, v23'); a('v_add_f32 v20, v20, v22')
        allreduce('v_add_f32', 20, 21)
        a(f'v_mul_f32 v20, {f2u(1 / 512)}, v20')
        a('v_sub_f32 v22, v12, v20'); a('v_mul_f32 v23, v22, v22')
        for k in range(1, 8):
            a(f'v_sub_f32 v22, v{12 + k}, v20'); a('v_fmac_f32 v23, v22, v22')
        allreduce('v_add_f32', 23, 21)
        a(f'v_mul_f32 v23, {f2u(1 / 512)}, v23')
        bf16r(20, 20)
        bf16r(23, 23)
        a(f'v_add_f32 v23, {f2u(1e-5)}, v23')
        bf16r(23, 23)
        a('v_sqrt_f32 v23, v23')
        bf16r(23, 23)
        a('v_rcp_f32 v24, v23')
        for d in range(4):
            lo, hi = 12 + 2 * d, 13 + 2 * d
            a(f'v_sub_f32 v{lo}, v{lo}, v20'); a(f'v_sub_f32 v{hi}, v{hi}, v20')
            a(f'v_cvt_pk_bf16_f32 v{hi}, v{lo}, v{hi}')
            a(f'v_lshlrev_b32 v{lo}, 16, v{hi}'); a(f'v_and_b32 v{hi}, s45, v{hi}')
            a(f'v_mul_f32 v25, v{lo}, v24'); a(f'v_mul_f32 v26, v{hi}, v24')
            a(f'v_fma_f32 v{lo}, -v25, v23, v{lo}'); a(f'v_fma_f32 v{hi}, -v26, v23, v{hi}')
            a(f'v_fmac_f32 v25, v{lo}, v24'); a(f'v_fmac_f32 v26, v{hi}, v24')
            a(f'v_cvt_pk_bf16_f32 v{8 + d}, v25, v26')

    def pair_gemv(w0, w1, xp, acc, t):
        for d in range(4):
            a(f'v_perm_b32 v{t + 2 * d}, v{w1 + d}, v{w0 + d}, s43')
            a(f'v_perm_b32 v{t + 2 * d + 1}, v{w1 + d}, v{w0 + d}, s44')
        for k in range(8):
            a(f'v_dot2c_f32_bf16 v{acc + k}, v{t + k}, v{xp}')

    def zero(b, n):
        for k in range(n):
            a(f'v_mov_b32 v{b + k}, 0')

    def tagcheck(tags, t, stag='s6'):
        a(f'v_xor_b32 v{t}, {stag}, v{tags[0]}')
        for r in tags[1:]:
            a(f'v_bitop3_b32 v{t}, v{t}, v{r}, {stag} bitop3:0xf6')
        a(f'v_cmp_ne_u32 vcc, 0, v{t}')

    def poll_tail(lbl, sleep=1):
        a(f's_cbranch_vccz {lbl}_ok')
        a('s_sub_u32 s7, s7, 1')
        a('s_cbranch_scc1 L_end')
        if sleep:
            a(f's_sleep {sleep}')
        a(f's_branch {lbl}')
        a(f'{lbl}_ok:')

    def ldswait(lbl, addr, n, va, sleep):
        a(f'v_mov_b32 v{va}, {addr}')
        a(f'{lbl}:')
        a(f'ds_read_b32 v{va + 1}, v{va}')
        a('s_waitcnt lgkmcnt(0)')
        a(f'v_cmp_gt_u32 vcc, {n}, v{va + 1}')
        poll_tail(lbl, sleep=sleep)

    def masks(b, t):
        a(f'v_and_b32 v{t}, 1, v2')
        a(f'v_lshlrev_b32 v{t}, 4, v{t}')
        a(f'v_mov_b32 v{t + 1}, 0xffff')
        a(f'v_lshlrev_b32 v{t}, v{t}, v{t + 1}')
        a(f'v_lshrrev_b32 v{t + 1}, 1, v2')
        for d in range(4):
            a(f'v_cmp_eq_u32 vcc, {d}, v{t + 1}')
            a(f'v_cndmask_b32 v{b + d}, 0, v{t}, vcc')

    def mktag():
        a('s_add_u32 s6, s42, 0x9e3779b9')
        a('s_and_b32 s6, s6, -16')

    def tagA():
        a('s_getreg_b32 s49, hwreg(HW_REG_XCC_ID, 0, 4)')
        a('s_or_b32 s49, s49, s6')

    def exchange(lbl, store, loads, tags, t, after=None):
        if 's' not in knock:
            a(store + ('' if fast else ' ' + hs))
        stamp(3)
        if after:
            after()
        a('s_mov_b32 s48, %d' % (0 if fast else 1))
        if 'q' in knock:
            return
        ldswait(lbl + 'w', L_CN1, gcnt, 62, 4)
        stamp(5)
        a(f's_mov_b32 s14, {lazy if fast else -1}')
        a(f'{lbl}:')
        for ln in loads:
            a(ln + ' ' + hl)
        a('s_waitcnt vmcnt(0)')
        tagcheck(tags, t, 's49')
        a(f's_cbranch_vccz {lbl}_ok')
        a(f'v_cmp_lt_u32 vcc, 15, v{t}')
        a(f's_cbranch_vccz {lbl}_far')
        a('s_cmp_lg_u32 s14, 0')
        a(f's_cbranch_scc1 {lbl}_r')
        a(store + ' ' + hs)
        a(f'{lbl}_r:')
        a('s_sub_u32 s14, s14, 1')
        a('s_sub_u32 s7, s7, 1')
        a('s_cbranch_scc1 L_end')
        a('s_sleep 1')
        a(f's_branch {lbl}')
        a(f'{lbl}_far:')
        a(store + ' ' + hs)
        a('s_mov_b32 s48, 1')
        a(f'{lbl}_ok:')

    def glist(r, va, vb):
        hl = hlc
        return [f'global_load_dwordx4 v[{r}:{r + 3}], v{va}, s[40:41] offset:-4096 {hl}',
                f'global_load_dwordx4 v[{r + 4}:{r + 7}], v{va}, s[40:41] {hl}',
                f'global_load_dwordx4 v[{r + 8}:{r + 11}], v{vb}, s[40:41] offset:-4096 {hl}',
                f'global_load_dwordx4 v[{r + 12}:{r + 15}], v{vb}, s[40:41] {hl}']

    def slist(r):
        if not slay:
            return glist(r, 25, 26)
        return [f'global_load_dwordx4 v[{r + 4 * i}:{r + 4 * i + 3}], v25, s[40:41] offset:{1024 * i} {hlc}' for i in range(4)]

    def gsum1(r, d):
        a(f'v_add_f32 v{d}, v{r}, v{r + 4}'); a(f'v_add_f32 v{d + 1}, v{r + 2}, v{r + 6}')
        a(f'v_add_f32 v{d + 2}, v{r + 8}, v{r + 12}'); a(f'v_add_f32 v{d + 3}, v{r + 10}, v{r + 14}')

    def gsum2(d):
        a(f'v_add_f32 v{d}, v{d}, v{d + 2}'); a(f'v_add_f32 v{d + 1}, v{d + 1}, v{d + 3}')
        a(f'v_permlane32_swap_b32 v{d}, v{d + 1}')
        a(f'v_add_f32 v{d}, v{d}, v{d + 1}')
        swapop('v_add_f32', d, d + 1, 16)
        a(f'v_add_f32_dpp v{d}, v{d}, v{d} row_ror:8 {DPPM}')
        bf16r(d, d)

    def common():
        a('s_lshl_b32 s10, s3, 3')
        a('s_add_u32 s10, s10, s4')
        a('s_mov_b32 s45, 0xffff0000')
        a(f's_mov_b32 s7, {SPIN}')

    stamp(0)
    a('s_load_dwordx16 s[16:31], s[0:1], 0')
    a('v_lshrrev_b32 v2, 6, v0')
    a('s_cmpk_ge_u32 s2, 256')
    a('s_cbranch_scc1 L_end')
    a('v_readfirstlane_b32 s5, v2')
    a('s_load_dwordx8 s[32:39], s[0:1], 64')
    a('s_load_dwordx2 s[40:41], s[0:1], 96')
    a('s_and_b32 s8, s5, 14')
    a('s_cmp_lg_u32 s8, 2')
    a('s_cbranch_scc1 L_not23')
    if epf:
        a('s_getpc_b64 s[12:13]')
        for i in range(epf):
            a(f's_load_dword s{88 + i}, s[12:13], {128 * (i + 2)}')
    if et & 8:
        a('s_mov_b32 s9, 0x200000')
    a('v_mov_b64 v[8:9], 0')
    a('v_mov_b64 v[10:11], 0')
    a(f'ds_write_b128 v8, v[8:11] offset:{L_FLAG}')
    a('s_waitcnt lgkmcnt(0)')
    if et & 2:
        a('s_load_dword s88, s[28:29], 0')
    if et & 64:
        a('s_load_dword s89, s[32:33], 0')
        a('s_load_dword s90, s[30:31], 0')
    if et & 8:
        a('s_load_dword s89, s[22:23], 0')
        a('s_load_dword s90, s[22:23], s9')
    if et & 16:
        a('s_load_dword s42, s[40:41], 0')
    a('s_barrier')
    a('s_branch L_h23')
    a('L_not23:')
    a('s_and_b32 s3, s2, 7')
    a('s_bfe_u32 s9, s2, 0x20003')
    a('s_lshl2_add_u32 s3, s3, s9')
    a('s_lshr_b32 s4, s2, 5')
    a('v_and_b32 v1, 63, v0')
    a('v_and_b32 v2, 15, v0')
    a('v_lshrrev_b32 v3, 4, v1')
    a('s_sub_u32 s11, s5, 4')
    a('s_cbranch_scc1 L_01')
    a('s_and_b32 s8, s11, 3')
    a('s_xor_b32 s8, s8, s4')
    a('s_lshl3_add_u32 s9, s9, s11')
    a('s_lshl3_add_u32 s8, s9, s8')
    a('s_lshl_b32 s9, s3, 11')
    a('s_add_u32 s8, s8, s9')
    a('s_addk_i32 s8, 0x700')
    a('s_lshl_b32 s8, s8, 12')
    a('v_and_b32 v4, 12, v0')
    a('v_add_lshl_u32 v4, v4, v3, 2')
    a('v_and_or_b32 v4, v0, 3, v4')
    a('v_lshl_add_u32 v4, v4, 4, s8')
    if et & 32:
        a(f's_cmp_lg_u32 s11, {etw}')
    a('s_waitcnt lgkmcnt(0)')
    if et & 32:
        a('s_cbranch_scc1 L_net')
    if et & 1:
        a('s_load_dword s88, s[18:19], s8')
    if et & 4:
        a('s_load_dword s89, s[20:21], s8')
    if et & 32:
        a('L_net:')
    if not kfirst:
        a('s_barrier')
    stamp(1)
    NMIN, NMAX, W2 = 5, 6, 112

    def w2addr():
        a('s_lshl_b32 s8, s46, 13')
        a('s_lshl_b32 s9, s4, 7')
        a('s_add_u32 s8, s8, s9')
        a('s_movk_i32 s9, 0x2000')
        a('v_lshlrev_b32 v14, 10, v6')
        a('v_lshl_add_u32 v14, v7, 4, v14')
        a('v_add_u32 v104, s8, v14')
        for i in range(1, NMAX):
            a(f'v_add_u32 v{104 + i}, s9, v{103 + i}')
        zero(W2 + 4 * NMIN, 4 * ((NMAX + 1) // 2 * 2 - NMIN))

    def w2loads():
        for i in range(NMAX if 'm' not in knock else 0):
            if i >= NMIN:
                a(f's_cmp_le_u32 s47, {i}')
                a('s_cbranch_scc1 L_no6')
            a(f'global_load_dwordx4 v[{W2 + 4 * i}:{W2 + 4 * i + 3}], v{104 + i}, s[32:33] {pol}')
        a('L_no6:')
        if b1late:
            a('s_mov_b64 exec, s[50:51]')
            a('global_load_ushort v60, v61, s[30:31]')
            a('s_mov_b64 exec, -1')

    def HELPERS():
        a('L_01:')
        a('v_lshlrev_b32 v5, 4, v1')
        a('s_cmp_eq_u32 s5, 1')
        a('s_cbranch_scc1 L_mlp0')
        a('v_lshlrev_b32 v6, 17, v3')
        a('v_lshl_add_u32 v6, v2, 4, v6')
        a('s_lshl_b32 s8, s4, 19')
        a('s_lshl_b32 s9, s3, 8')
        a('s_add_u32 s8, s8, s9')
        a('s_movk_i32 s9, 0x2000')
        a('v_add_u32 v40, s8, v6')
        for i in range(1, 16):
            a(f'v_add_u32 v{40 + i}, s9, v{39 + i}')
        a('s_waitcnt lgkmcnt(0)')
        if 'x' not in knock and not xlast:
            a('global_load_dwordx4 v[8:11], v5, s[16:17]')
        for i in range(16 if 'w' not in knock else 0):
            a(f'global_load_dwordx4 v[{104 + 4 * i}:{107 + 4 * i}], v{40 + i}, s[22:23] {pol}')
        if xlast == 1:
            a('global_load_dwordx4 v[8:11], v5, s[16:17]')
        a('s_barrier')
        if xlast == 2:
            a('global_load_dwordx4 v[8:11], v5, s[16:17]')
        a('s_branch L_q')
        a('L_mlp0:')
        a('s_mul_i32 s46, s3, 43')
        a('s_add_u32 s47, s46, 43')
        a('s_lshr_b32 s46, s46, 3')
        a('s_lshr_b32 s47, s47, 3')
        a('s_sub_u32 s47, s47, s46')
        a('v_and_b32 v7, 7, v1')
        a('v_lshrrev_b32 v6, 3, v1')
        a('v_cmp_gt_u32 s[50:51], s47, v7')
        a('v_add_u32 v12, s46, v7')
        a('v_lshlrev_b32 v13, 3, v12')
        a('v_add_lshl_u32 v61, v13, v6, 1')
        a('s_lshl_b32 s8, s4, 6')
        a('v_lshl_add_u32 v14, v6, 3, s8')
        a('s_movk_i32 s9, 2752')
        a('v_mul_lo_u32 v14, v14, s9')
        a('s_movk_i32 s9, 5504')
        a('v_lshl_add_u32 v100, v12, 4, v14')
        for i in range(1, 4):
            a(f'v_add_u32 v{100 + i}, s9, v{99 + i}')
        if not w2late:
            w2addr()
        a('s_waitcnt lgkmcnt(0)')
        if 'x' not in knock and not xlast:
            a('global_load_dwordx4 v[8:11], v5, s[16:17]')
        a('s_mov_b64 exec, s[50:51]')
        for i in range(8 if 'm' not in knock else 0):
            a(f'global_load_dwordx4 v[{64 + 4 * i}:{67 + 4 * i}], v{100 + i // 2}, s[28:29] offset:{(i & 1) * 2752} {w1pol}')
        if 'x' not in knock and not b1late:
            a('global_load_ushort v60, v61, s[30:31]')
        a('s_mov_b64 exec, -1')
        if not w2late:
            w2loads()
        if xlast == 1:
            a('global_load_dwordx4 v[8:11], v5, s[16:17]')
        a('s_barrier')
        if xlast == 2:
            a('global_load_dwordx4 v[8:11], v5, s[16:17]')
        a('s_branch L_mlp')

    KA, VA, KB, VB = 40, 72, 104, 136
    rounds = [('K', 0, 0), ('K', 0, 1), ('V', 0, 0), ('V', 0, 1), ('K', 1, 0), ('K', 1, 1), ('V', 1, 0), ('V', 1, 1)]
    cur = {'K': 0, 'V': 0}

    def addr(r):
        typ, u, t = rounds[r]
        areg = 4 if typ == 'K' else 5
        want = (t << 18) | (u << 19)
        if hom and u == 1:
            want ^= t << 13
        if cur[typ] != want:
            if hom and u == 1 and t == 0:
                a(f's_and_b32 s9, s11, {2 if hom == 1 else 3}')
                a('s_lshl_b32 s9, s9, 12')
                a(f's_xor_b32 s9, s9, {cur[typ] ^ want}')
                a(f'v_xor_b32 v{areg}, s9, v{areg}')
            else:
                a(f'v_xor_b32 v{areg}, {cur[typ] ^ want}, v{areg}')
            cur[typ] = want

    def loads(r):
        typ, u, t = rounds[r]
        base = ((KA, KB) if typ == 'K' else (VA, VB))[u] + 16 * t
        for i in range(4):
            if typ == 'K':
                a(f'global_load_dwordx4 v[{base + 4 * i}:{base + 4 * i + 3}], v4, s[18:19] offset:{i * 1024} {pol}')
            else:
                a(f'global_load_dwordx4 v[{base + 4 * i}:{base + 4 * i + 3}], v5, s[20:21] offset:{i * 256} {pol}')

    def early(r):
        addr(r)
        a('s_waitcnt vmcnt(4)')
        a('s_memrealtime s[12:13]')
        a('s_waitcnt lgkmcnt(0)')
        a('s_sub_u32 s12, s12, s14')
        a(f's_cmp_gt_u32 s12, {int(ad[0] + ad[1] * (r - 1))}')
        a('s_cselect_b32 s56, 1, 0')
        a(f's_cbranch_scc0 L_e{r}')
        loads(r)
        a(f'L_e{r}:')

    def issue(r):
        if ad and r >= ad[2]:
            a('s_cmp_lg_u32 s56, 0')
            a(f's_cbranch_scc1 L_i{r}')
            a('s_waitcnt vmcnt(0)')
            loads(r)
            a(f'L_i{r}:')
            return
        addr(r)
        if r == 7 and numa:
            a('s_lshr_b32 s48, s3, 2')
            a(f's_xor_b32 s48, s48, {fin}')
            a('s_or_b32 s48, s48, s11')
            a(f'v_mov_b32 v37, {CH}')
        if r:
            a('s_waitcnt vmcnt(0)')
        if r == 7 and numa:
            a('s_cbranch_scc1 L_nch')
            a(f'global_load_dwordx2 v[38:39], v37, s[40:41] {hl}')
            a('L_nch:')
        loads(r)

    def sprefetch(r):
        typ, u, t = rounds[r]
        b = 18 if typ == 'K' else 20
        a(f's_xor_b32 s12, s58, {(t << 18) | (u << 19)}')
        a(f's_add_u32 s12, s{b}, s12')
        a(f's_addc_u32 s13, s{b + 1}, 0')
        for i in range(spn):
            a(f's_load_dword s{88 + (i & 7)}, s[12:13], {128 * i}')

    def getq():
        a(f'v_mov_b32 v16, {L_FLAG}')
        a('v_and_b32 v17, 3, v2')
        a('v_lshlrev_b32 v17, 4, v17')
        a('v_lshl_add_u32 v17, v3, 6, v17')
        a('L_qw:')
        a('ds_read_b32 v10, v16')
        a(f'ds_read_b128 v[12:15], v17 offset:{L_Q}')
        a('s_waitcnt lgkmcnt(0)')
        a('v_cmp_eq_u32 vcc, 0, v10')
        poll_tail('L_qw', sleep=2)
        stamp(3)
        for v in range(4):
            for d in range(4):
                a(f'v_mov_b32_dpp v{24 + 4 * v + d}, v{12 + d} quad_perm:[0,1,2,3] row_mask:0xf bank_mask:{1 << v}')

    def qk(u):
        kr = (KA, KB)[u]
        for t in range(2):
            for s in range(4):
                c = '0' if s == 0 else f'v[{12 + 4 * t}:{15 + 4 * t}]'
                r = kr + 16 * t + 4 * s
                a(f'{MF} v[{12 + 4 * t}:{15 + 4 * t}], v[{24 + 4 * s}:{27 + 4 * s}], v[{r}:{r + 3}], {c}')
        for r in range(4):
            for t in range(2):
                qp = f'quad_perm:[{r},{r},{r},{r}]'
                if r == 0:
                    a(f'v_mov_b32_dpp v{t}, v{12 + 4 * t} {qp} {DPPM}')
                else:
                    a(f'v_add_f32_dpp v{t}, v{12 + 4 * t + r}, v{t} {qp} {DPPM}')
        a('v_cndmask_b32 v12, v0, v1, s[54:55]')
        bf16r(12, 12)
        a(f'v_mul_f32 v12, {f2u(128 ** -0.5)}, v12')
        bf16r(12, 12)
        a('v_mul_f32 v12, s46, v12')
        a(f'v_max_f32_dpp v13, v12, v12 row_ror:8 {DPPM}')
        a(f'v_max_f32_dpp v13, v13, v13 row_ror:4 {DPPM}')
        a(f'v_max_f32_dpp v13, v13, v13 {QX1} {DPPM}')
        swapop('v_max_f32', 13, 14, 16)
        swapop('v_max_f32', 13, 14, 32)
        if u == 1:
            a('v_max_f32 v13, v13, v10')
            a('v_sub_f32 v14, v10, v13')
            a('v_exp_f32 v14, v14')
        a('v_sub_f32 v12, v12, v13')
        a('v_exp_f32 v12, v12')
        a('v_mov_b32 v10, v13')
        if u == 1:
            for r in range(4):
                a(f'v_mul_f32 v{20 + r}, v14, v{20 + r}')
        a('v_cvt_pk_bf16_f32 v15, v12, v12')
        a(f'v_add_f32_dpp v13, v12, v12 row_ror:8 {DPPM}')
        extra = [f'v_add_f32_dpp v13, v13, v13 row_ror:4 {DPPM}', f'v_add_f32_dpp v13, v13, v13 {QX1} {DPPM}',
                 'v_mov_b32 v16, v13', 'v_permlane16_swap_b32 v13, v16', 'v_add_f32 v13, v13, v16',
                 'v_mov_b32 v16, v13', 'v_permlane32_swap_b32 v13, v16',
                 'v_add_f32 v11, v13, v16' if u == 0 else 'v_add_f32 v13, v13, v16']
        for i in range(8):
            for d in range(4):
                a(f'v_and_b32_dpp v{kr + 4 * i + d}, v15, v{6 + d} row_newbcast:{4 * (i & 3) + (i >> 2)} {DPPM}')
            a(extra[i])
        if u == 1:
            a('v_fma_f32 v11, v11, v14, v13')
            a('s_lshl_b32 s8, s11, 3')
            a(f's_add_u32 s8, s8, {L_ML}')
            a('v_mov_b32 v12, s8')
            a('ds_write_b64 v12, v[10:11]')
            a('s_lshl_b32 s8, s11, 9')
            a('v_lshlrev_b32 v8, 5, v2')
            a('v_lshl_add_u32 v8, v3, 4, v8')
            a('v_add_u32 v8, s8, v8')

    def pv(u, t, wait=False):
        kr, vr = ((KA, VA), (KB, VB))[u]
        for i in range(4 * t, 4 * t + 4):
            if wait:
                a(f's_waitcnt vmcnt({4 * t + 3 - i})')
            c = '0' if (u == 0 and i == 0) else 'v[20:23]'
            a(f'{MF} v[20:23], v[{kr + 4 * i}:{kr + 4 * i + 3}], v[{vr + 4 * i}:{vr + 4 * i + 3}], {c}')

    def signal(addr):
        a('v_mov_b32 v12, 1')
        a(f'v_mov_b32 v13, {addr}')
        a('s_mov_b64 exec, 1')
        a('ds_add_u32 v13, v12')
        a('s_mov_b64 exec, -1')

    for r in range(8):
        issue(r)
        if 1 <= r <= 4:
            stamp(7 + r)
        if r == 0:
            if ad:
                a('s_memrealtime s[14:15]')
            if kfirst:
                a('s_barrier')
            a('s_branch L_kv1')
            HELPERS()
            a('L_kv1:')
            if prio:
                a('s_setprio 3')
            a('v_lshlrev_b32 v5, 10, v3')
            a('v_lshl_add_u32 v5, v2, 4, v5')
            a('v_add_u32 v5, s8, v5')
            common()
            a('s_load_dword s42, s[40:41], 0')
            masks(6, 10)
            a('s_mov_b32 s54, 0xaaaaaaaa')
            a('s_mov_b32 s55, 0xaaaaaaaa')
            a(f's_mov_b32 s46, {f2u(LOG2E)}')
            zero(24, 16)
        if ad and r + 1 >= ad[2] and r < 7:
            early(r + 1)
        if r == ground:
            signal(L_CN1)
        if r == posA - 1:
            stamp(6)
            if 'c' not in knock:
                if prio == 2:
                    a('s_setprio 1')
                getq()
                qk(0)
                pv(0, 0)
                pv(0, 1)
                if prio == 2:
                    a('s_setprio 3')
            stamp(7)
        if r == 6:
            if 'c' not in knock:
                if prio == 2:
                    a('s_setprio 1')
                qk(1)
                if prio == 2:
                    a('s_setprio 3')
            else:
                a('v_mov_b32 v8, 0')
                a('s_waitcnt lgkmcnt(0)')
            stamp(4)
        if r + 1 in sp:
            sprefetch(r + 1)
        if spw and r == 6:
            signal(L_CN4)
    signal(L_CNT)
    stamp(2)
    a('v_lshl_add_u32 v1, v3, 4, v2')
    a('s_lshl_b32 s8, s3, 3')
    a('s_add_u32 s8, s8, s11')
    a('s_lshl_b32 s8, s8, 10')
    a(f's_add_u32 s8, s8, {OS}')
    a('v_lshl_add_u32 v4, v1, 4, s8')
    a(f's_mul_i32 s8, s11, {OBS}')
    a(f's_add_u32 s8, s8, {L_OB}')
    a('v_lshl_add_u32 v5, v1, 3, s8')
    mktag()
    if fin is None:
        a('s_and_b32 s48, s3, 7')
        a('s_xor_b32 s48, s48, s4')
        a('s_or_b32 s48, s48, s11')
        a('s_lshr_b32 s8, s3, 3')
        a('s_mov_b32 s12, s4')
    else:
        a('s_lshr_b32 s48, s3, 2')
        a(f's_xor_b32 s48, s48, {fin}')
        a('s_or_b32 s48, s48, s11')
        a('s_and_b32 s8, s3, 3')
        a('s_mov_b32 s12, s4')
    a('s_lshl_b32 s9, s12, 2')
    a('s_add_u32 s9, s9, s8')
    a('s_mov_b32 s59, s9')
    a('s_lshl_b32 s9, s9, 5')
    a('v_and_b32 v6, 7, v1')
    a('v_lshl_add_u32 v24, v6, 2, s9')
    a('v_lshrrev_b32 v7, 3, v1')
    a('v_lshlrev_b32 v7, 9, v7')
    a('v_lshl_add_u32 v7, v6, 4, v7')
    a('s_lshl_b32 s8, s8, 7')
    a('s_lshl_b32 s9, s12, 14')
    a('s_add_u32 s8, s8, s9')
    a(f's_add_u32 s8, s8, {SS + 4096}')
    a('v_add_u32 v25, s8, v7')
    a('v_add_u32 v26, 0x2000, v25')
    a(f'v_add_u32 v27, {US - SS}, v25')
    a(f'v_add_u32 v28, {US - SS}, v26')
    if slay:
        a(f's_mul_i32 s8, s59, {4096 * slay}')
        a(f's_add_u32 s8, s8, {S2}')
        a('v_lshl_add_u32 v25, v1, 4, s8')
    a('s_mov_b32 s54, 0')
    a('s_mov_b32 s55, -1')
    if ad:
        a('s_waitcnt vmcnt(4)')
    pv(1, 0)
    pv(1, 1, wait=True)
    stamp(5)
    a('s_mov_b32 exec_hi, 0')
    a(f'ds_write_b128 v8, v[20:23] offset:{L_OP}')
    a('s_mov_b32 exec_hi, -1')
    a('s_cmp_lg_u32 s48, 0')
    if not preb1:
        a('s_waitcnt lgkmcnt(0)')
        a('s_barrier')
        if b2:
            a('s_barrier')
    a('s_cbranch_scc1 L_nox')
    if 'f' in knock:
        a('s_branch L_nox')
    if numa:
        a('s_branch L_cc1')
        a('L_cc:')
        a(f'global_load_dwordx2 v[38:39], v37, s[40:41] {hl}')
        a('s_waitcnt vmcnt(0)')
        a('L_cc1:')
        a('v_cmp_ne_u32 vcc, s6, v39')
        poll_tail('L_cc', sleep=1)
        a('v_and_b32 v38, 0x2000, v38')
        a('v_add_u32 v25, v25, v38')
    a('global_load_dword v29, v24, s[16:17]')
    a('global_load_dword v30, v24, s[34:35]')
    a('global_load_dword v31, v24, s[36:37]')
    if uearly:
        for ln in glist(64, 27, 28):
            a(ln)
        if swarm:
            for ln in slist(80):
                a(ln)
    a('L_nox:')
    if prio:
        a('s_setprio 0')
    if preb1:
        a('s_waitcnt lgkmcnt(0)')
        a('s_barrier')
        if b2:
            a('s_barrier')
    if 't' in knock:
        a('s_branch L_end')
    if selfb:
        a('s_cmp_eq_u32 s11, s4')
        a('s_cbranch_scc1 L_pb_done')
    a('s_mov_b32 exec_hi, 1')
    if delb:
        a(f's_sleep {delb}')
    for k in range(PB):
        a(f'global_load_dwordx4 v[{40 + 4 * k}:{43 + 4 * k}], v4, s[40:41] {hlb}')
        if k < PB - 1 and gapb:
            a(f's_sleep {gapb}')
    a('L_pb:')
    for k in range(PB):
        a(f's_waitcnt vmcnt({PB - 1})')
        tagcheck([41 + 4 * k, 43 + 4 * k], 12)
        a(f's_cbranch_vccz L_pb_ok{k}')
        a(f'global_load_dwordx4 v[{40 + 4 * k}:{43 + 4 * k}], v4, s[40:41] {hlb}')
    a('s_sub_u32 s7, s7, 1')
    a('s_cbranch_scc0 L_pb')
    a('s_branch L_end')
    for k in range(PB):
        a(f'L_pb_ok{k}:')
        a(f'ds_write2_b32 v5, v{40 + 4 * k}, v{42 + 4 * k} offset1:1')
        if k < PB - 1:
            a('s_branch L_pb_done')
    a('L_pb_done:')
    stamp(11)
    a('s_cmp_lg_u32 s48, 0')
    a('s_waitcnt lgkmcnt(0)')
    a('s_barrier')
    if stamps and not amp and b4 == 1:
        a('s_cbranch_scc0 L_fin')
        a('s_barrier')
        a('s_branch L_end')
        a('L_fin:')
    else:
        a('s_cbranch_scc1 L_end')
    if 'S' in knock or 'P' in knock:
        a('s_branch L_end')
    a('s_mov_b32 exec_hi, -1')
    SR = 80

    def xb():
        a('v_lshlrev_b32 v32, 16, v30'); a('v_and_b32 v33, s45, v30')
        a('v_lshlrev_b32 v34, 16, v29'); a('v_and_b32 v35, s45, v29')
        a('v_cndmask_b32 v32, v32, v33, s[54:55]')
        a('v_cndmask_b32 v34, v34, v35, s[54:55]')
    if uearly:
        for ln in slist(SR):
            a(ln)
        a('s_waitcnt vmcnt(4)')
        a('s_branch L_pu1')
        a('L_pu:')
        for ln in glist(64, 27, 28):
            a(ln)
        a('s_waitcnt vmcnt(0)')
        a('L_pu1:')
        if 'u' in knock:
            a('s_branch L_pu_ok')
        tagcheck([65 + 2 * k for k in range(8)], 12)
        poll_tail('L_pu', sleep=0)
        xb()
    else:
        a('L_pu:')
        for ln in glist(64, 27, 28):
            a(ln)
        a('s_waitcnt vmcnt(4)')
        xb()
        a('s_waitcnt vmcnt(0)')
        tagcheck([65 + 2 * k for k in range(8)], 12)
        poll_tail('L_pu', sleep=0)
    def g1():
        gsum1(64, 12)
        gsum2(12)
        a('v_add_f32 v32, v32, v12')
        bf16r(32, 32)

    def g2():
        a(f'v_mul_f32 v33, {f2u(-LOG2E)}, v32')
        a('v_exp_f32 v33, v33')
        a('v_add_f32 v33, 1.0, v33')
        a('v_rcp_f32 v33, v33')
        a('v_mul_f32 v32, v32, v33')
        bf16r(32, 32)
        a('v_lshrrev_b32 v33, 4, v1')
        a('v_and_b32 v33, 2, v33')
        a('v_add_u32 v24, v24, v33')
        a('v_mov_b32 v35, 0')
        a('v_mov_b32 v36, s6')
    if b4:
        g1()
        g2()
        if b4 == 1:
            a('s_barrier')
        for k in range(1, PC):
            for ln in slist(SR + 16 * k):
                a(ln)
            if k < PC - 1 and gapc:
                a(f's_sleep {gapc}')
    else:
        for k in range(PC):
            if not (uearly and k == 0):
                for ln in slist(SR + 16 * k):
                    a(ln)
            kk = k - (1 if uearly else 0)
            if kk == 0:
                g1()
            elif kk == 1:
                g2()
            elif kk > 1 and k < PC - 1 and gapc:
                a(f's_sleep {gapc}')
    stamp(12)
    a('L_ps:')
    for k in range(PC):
        r = SR + 16 * k
        a(f's_waitcnt vmcnt({4 * (PC - 1)})')
        tagcheck([r + 1 + 2 * j for j in range(8)], 16)
        gsum1(r, 12)
        a('s_cbranch_vccz L_ps_ok')
        for ln in slist(r):
            a(ln)
    a('s_sub_u32 s7, s7, 1')
    a('s_cbranch_scc0 L_ps')
    a('s_branch L_end')
    a('L_ps_ok:')
    stamp(10)
    gsum2(12)
    a('v_mul_f32 v12, v12, v32')
    bf16r(12, 12)
    a('v_add_f32 v12, v12, v34')
    a('v_cvt_pk_bf16_f32 v12, v12, v12')
    a('s_mov_b32 exec_lo, 0xff')
    a('s_mov_b32 exec_hi, 0xff')
    a(f'global_store_short v24, v12, s[36:37] {ost}')
    a('s_cmp_lg_u32 s59, 0')
    a('s_cbranch_scc1 L_end')
    a('s_mov_b64 exec, 1')
    a(f'global_store_dword v35, v36, s[40:41] {eps}')
    if amp:
        stamp(13)
        a('s_waitcnt lgkmcnt(0)')
        a(f's_sub_u32 s8, s{60 + 2 * ampst}, s60')
        a(f's_mul_i32 s8, s8, {amp}')
        a('s_min_u32 s8, s8, 100000')
        a('L_amp:')
        a('s_memrealtime s[12:13]')
        a('s_waitcnt lgkmcnt(0)')
        a('s_sub_u32 s9, s12, s86')
        a('s_cmp_lt_u32 s9, s8')
        a('s_cbranch_scc1 L_amp')
        a('s_endpgm')
    a('s_branch L_end')

    a('L_q:')
    stamp(1)
    common()
    a('s_load_dword s42, s[40:41], 0')
    a('v_and_b32 v4, 1, v3')
    a('v_lshlrev_b32 v4, 3, v4')
    a('v_lshl_add_u32 v4, v2, 4, v4')
    a('v_lshrrev_b32 v6, 1, v3')
    a('v_lshl_add_u32 v4, v6, 2, v4')
    masks(28, 32)
    a('s_waitcnt vmcnt(%d)' % (0 if xlast else 16))
    stamp(2)
    layernorm()
    a(f'ds_write_b128 v5, v[8:11] offset:{L_XN}')
    a('s_lshl_b32 s8, s4, 7')
    a('v_lshl_add_u32 v6, v1, 1, s8')
    a(f'ds_read_u16 v12, v6 offset:{L_XN}')
    a('s_waitcnt lgkmcnt(0)')
    mktag()
    tagA()
    a('v_lshl_or_b32 v12, v12, 16, v12')
    for i in range(17):
        if i < 16:
            for d in range(4):
                a(f'v_and_b32_dpp v{40 + 4 * i + d}, v12, v{28 + d} row_newbcast:{i} {DPPM}')
        if i:
            j = i - 1
            a(f's_waitcnt vmcnt({15 - j})')
            c = '0' if j == 0 else 'v[20:23]'
            a(f'{MF} v[20:23], v[{40 + 4 * j}:{43 + 4 * j}], v[{104 + 4 * j}:{107 + 4 * j}], {c}')
    a('s_lshl_b32 s8, s10, 10')
    a(f's_add_u32 s8, s8, {QS}')
    a('v_add_u32 v7, s8, v5')
    a('v_mov_b32 v25, s49')
    a('v_mov_b32 v27, s49')
    a('s_lshl_b32 s8, s3, 13')
    a(f's_add_u32 s8, s8, {QS + 4096}')
    a('v_add_u32 v6, s8, v5')
    a('v_permlane32_swap_b32 v20, v22')
    a('v_permlane32_swap_b32 v21, v23')
    a('v_mov_b32 v24, v20')
    a('v_mov_b32 v26, v21')
    exchange('L_pq', 'global_store_dwordx4 v7, v[24:27], s[40:41]',
             [f'global_load_dwordx4 v[{28 + 4 * p}:{31 + 4 * p}], v6, s[40:41] offset:{p * 1024 - 4096}' for p in range(8)],
             [29 + 2 * k for k in range(16)], 60)
    for k in (0, 2):
        a(f'v_add_f32 v{28 + k}, v{28 + k}, v{32 + k}'); a(f'v_add_f32 v{36 + k}, v{36 + k}, v{40 + k}')
        a(f'v_add_f32 v{44 + k}, v{44 + k}, v{48 + k}'); a(f'v_add_f32 v{52 + k}, v{52 + k}, v{56 + k}')
        a(f'v_add_f32 v{28 + k}, v{28 + k}, v{36 + k}'); a(f'v_add_f32 v{44 + k}, v{44 + k}, v{52 + k}')
        a(f'v_add_f32 v{28 + k}, v{28 + k}, v{44 + k}')
    a('v_cvt_pk_bf16_f32 v28, v28, v30')
    a(f'ds_write_b32 v4, v28 offset:{L_Q}')
    a(f'v_mov_b32 v5, {L_FLAG}')
    a('v_mov_b32 v7, 1')
    a('s_waitcnt lgkmcnt(0)')
    a('ds_write_b32 v5, v7')
    stamp(4)
    a('s_branch L_service')

    a('L_mlp:')
    stamp(1)
    common()
    a('s_load_dword s42, s[40:41], 0')
    a('s_mov_b32 s43, 0x05040100')
    a('s_mov_b32 s44, 0x07060302')
    a('s_mov_b32 s52, 0xff00ff00')
    a('s_mov_b32 s53, 0xff00ff00')
    a(f's_waitcnt vmcnt({0 if xlast else 9 - b1late + (0 if w2late else NMIN)})')
    stamp(2)
    layernorm()
    layernorm()
    a(f'ds_write_b128 v5, v[8:11] offset:{L_YN}')
    a('s_lshl_b32 s8, s4, 7')
    a('v_lshl_add_u32 v6, v6, 4, s8')
    a(f'ds_read_b128 v[28:31], v6 offset:{L_YN}')
    zero(20, 8)
    a('s_waitcnt lgkmcnt(0)')
    mktag()
    tagA()
    a(f's_waitcnt vmcnt({(1 - b1late if not xlast else 0) if w2late else NMIN})')
    for t in range(4):
        pair_gemv(64 + 8 * t, 68 + 8 * t, 28 + t, 20, 36 + 8 * (t & 1))
    halve3(20)
    a('s_lshl_b32 s8, s3, 3')
    a('s_add_u32 s8, s8, s4')
    a('s_lshl_b32 s8, s8, 9')
    a(f's_add_u32 s8, s8, {HS}')
    a('v_lshl_add_u32 v4, v1, 3, s8')
    a('v_mov_b32 v26, v20')
    a('v_mov_b32 v27, s49')
    a('s_lshl_b32 s8, s3, 12')
    a(f's_add_u32 s8, s8, {HS}')
    a('v_lshl_add_u32 v6, v1, 3, s8')
    exchange('L_ph', 'global_store_dwordx2 v4, v[26:27], s[40:41]', after=(lambda: (a('v_lshrrev_b32 v6, 3, v1'), w2addr(), w2loads(), a('s_lshl_b32 s8, s3, 12'), a(f's_add_u32 s8, s8, {HS}'), a('v_lshl_add_u32 v6, v1, 3, s8'))) if w2late else None, loads=
             [f'global_load_dwordx2 v[{8 + 2 * p}:{9 + 2 * p}], v6, s[40:41] offset:{p * 512}' for p in range(8)],
             tags=[9 + 2 * k for k in range(8)], t=24)
    a('v_add_f32 v8, v8, v10'); a('v_add_f32 v12, v12, v14'); a('v_add_f32 v16, v16, v18'); a('v_add_f32 v20, v20, v22')
    a('v_add_f32 v8, v8, v12'); a('v_add_f32 v16, v16, v20'); a('v_add_f32 v8, v8, v16')
    bf16r(8, 8)
    a('v_lshlrev_b32 v60, 16, v60')
    a('v_add_f32 v8, v8, v60')
    bf16r(8, 8)
    c0 = -2.0 * 0.7978845608028654 * LOG2E
    a('v_mul_f32 v9, v8, v8')
    a(f'v_mov_b32 v10, {f2u(c0)}')
    a(f'v_fmamk_f32 v9, v9, {f2u(c0 * 0.044715)}, v10')
    a('v_mul_f32 v9, v9, v8')
    a('v_exp_f32 v9, v9')
    a('v_add_f32 v9, 1.0, v9')
    a('v_rcp_f32 v9, v9')
    a('v_mul_f32 v8, v8, v9')
    a('v_cndmask_b32 v8, 0, v8, s[50:51]')
    NP = (NMAX + 1) // 2
    for i in range(2 * NP):
        a(f'ds_swizzle_b32 v{10 + i}, v8 offset:{(i << 5) | 0x18}')
    zero(20, 8)
    a('s_waitcnt lgkmcnt(0)')
    for t in range(NP):
        a(f'v_cvt_pk_bf16_f32 v{10 + 2 * t}, v{10 + 2 * t}, v{11 + 2 * t}')
    for t in range(NP):
        pair_gemv(W2 + 8 * t, W2 + 4 + 8 * t, 10 + 2 * t, 20, 28)
    halve3(20)
    a('v_lshlrev_b32 v6, 6, v7')
    a('v_and_or_b32 v6, v1, 56, v6')
    a('s_lshl_b32 s8, s4, 5')
    a('s_add_u32 s8, s8, s3')
    a('s_lshl_b32 s8, s8, 9')
    a(f's_add_u32 s8, s8, {US}')
    a('v_add_u32 v100, s8, v6')
    a('v_mov_b32 v102, v20')
    a('v_mov_b32 v103, s6')
    UST = f'global_store_dwordx2 v100, v[102:103], s[40:41] {hs}'
    if uat == 'now' and 'u' not in knock:
        a(UST)
    stamp(4)
    a('s_branch L_service')

    a('L_h23:')
    a('s_and_b32 s3, s2, 7')
    a('s_bfe_u32 s9, s2, 0x20003')
    a('s_lshl2_add_u32 s3, s3, s9')
    a('s_lshr_b32 s4, s2, 5')
    a('v_and_b32 v1, 63, v0')
    a('v_and_b32 v2, 15, v0')
    a('v_lshrrev_b32 v3, 4, v1')
    common()
    a('v_mov_b32 v100, 0')
    a('s_lshl_b32 s8, s3, 23')
    a('s_add_u32 s8, s8, 0x700000')
    a('s_lshl_b32 s9, s3, 17')
    a('s_load_dword s42, s[40:41], 0')
    if stouch == 1:
        a('s_load_dword s88, s[20:21], s8')
        a('s_load_dword s89, s[24:25], s9')
        a('s_load_dword s90, s[34:35], 0')
        a('s_load_dword s91, s[36:37], 0')
    elif stouch:
        a('s_and_b32 s12, s3, 7')
        a('s_xor_b32 s12, s12, s4')
        a('s_xor_b32 s13, s5, 3')
        a('s_or_b32 s12, s12, s13')
        a('s_cbranch_scc1 L_nt')
        if stouch & 8:
            a('s_load_dword s94, s[32:33], 0')
            a('s_load_dword s95, s[30:31], 0')
        if stouch & 2:
            a('s_load_dword s88, s[20:21], s8')
            a('s_load_dword s89, s[24:25], s9')
        if stouch & 4:
            a('s_load_dword s90, s[34:35], 0')
            a('s_load_dword s91, s[36:37], 0')
        if cpf:
            a('s_getpc_b64 s[12:13]')
            a('L_pc:')
            a('s_sub_u32 s12, s12, L_pc-L_pb_done')
            a('s_subb_u32 s13, s13, 0')
            for i in range(9):
                a(f's_load_dword s{92 + (i & 3)}, s[12:13], {128 * i}')
        a('L_nt:')
    stamp(1)
    a('s_waitcnt lgkmcnt(0)')
    mktag()
    if numa and race:
        a('s_cmp_lg_u32 s5, 3')
        a('s_cbranch_scc1 L_service')
        a(f's_cmp_eq_u32 s10, {32 * fin + 10}')
        a('s_cselect_b32 s9, 0x2000, 0')
        a('s_cbranch_scc1 L_race')
        a(f's_cmp_lg_u32 s10, {32 * fin + 1}')
        a('s_cbranch_scc1 L_service')
        a('L_race:')
        a(f's_load_dwordx2 s[50:51], s[40:41], {CH} glc')
        a(f's_add_u32 s8, s9, {S2 + 0x80000}')
        a(f's_mov_b32 s57, {race}')
        a('L_pr:')
        a('s_waitcnt lgkmcnt(0)')
        a('s_load_dword s88, s[40:41], s8 glc')
        a('s_sub_u32 s57, s57, 1')
        a('s_cbranch_scc0 L_pr')
        a('v_mov_b32 v8, s9')
        a('v_mov_b32 v9, s6')
        a('v_mov_b32 v10, s50')
        a('v_mov_b32 v11, s51')
        a(f'v_mov_b32 v12, {CH}')
        a('s_cmp_eq_u32 s51, s6')
        a('s_waitcnt lgkmcnt(0)')
        a('s_cbranch_scc1 L_service')
        a('s_mov_b64 exec, 1')
        a(f'global_atomic_cmpswap_x2 v12, v[8:11], s[40:41] {hs}')
        a('s_mov_b64 exec, -1')
        a('s_nop 1')
        stamp(12)
    elif numa:
        a(f's_xor_b32 s8, s10, {32 * fin + 1}')
        a('s_xor_b32 s9, s5, 3')
        a('s_or_b32 s8, s8, s9')
        a('s_cbranch_scc1 L_service')
        a(f's_mov_b32 s8, {S2 + 0x80000}')
        a(f's_mov_b32 s9, {S2 + 0x82000}')
        a('s_mov_b32 s50, -1')
        a('s_mov_b32 s51, -1')
        a(f's_mov_b32 s57, {numa + 1}')
        a('s_memtime s[12:13]')
        a('s_waitcnt lgkmcnt(0)')
        a('L_pr:')
        a('s_load_dword s88, s[40:41], s8 glc')
        a('s_waitcnt lgkmcnt(0)')
        a('s_memtime s[14:15]')
        a('s_waitcnt lgkmcnt(0)')
        a('s_load_dword s89, s[40:41], s9 glc')
        a('s_sub_u32 s46, s14, s12')
        a('s_min_u32 s50, s50, s46')
        a('s_waitcnt lgkmcnt(0)')
        a('s_memtime s[12:13]')
        a('s_waitcnt lgkmcnt(0)')
        a('s_sub_u32 s47, s12, s14')
        a('s_min_u32 s51, s51, s47')
        a('s_sub_u32 s57, s57, 1')
        a('s_cmp_lg_u32 s57, 0')
        a('s_cbranch_scc1 L_pr')
        a('s_cmp_lt_u32 s51, s50')
        a('s_cselect_b32 s8, 0x2000, 0')
        a('v_mov_b32 v8, s8')
        a('v_mov_b32 v9, s6')
        a(f'v_mov_b32 v10, {CH}')
        a('s_mov_b64 exec, 1')
        a(f'global_store_dwordx2 v10, v[8:9], s[40:41] {hs}')
        a('s_mov_b64 exec, -1')
        stamp(12)
    if meas:
        a('s_cmp_lg_u32 s5, 3')
        a('s_cbranch_scc1 L_nomeas')
        a('s_and_b32 s8, s10, 15')
        a('s_cmp_lg_u32 s8, 1')
        a('s_cbranch_scc1 L_nomeas')
        a('s_lshr_b32 s8, s10, 4')
        a('s_lshl_b32 s8, s8, 7')
        a('s_add_u32 s8, s8, 0x1c0000')
        a('s_add_u32 s9, s8, 0x2000')
        a('s_mov_b32 s50, -1'); a('s_mov_b32 s51, -1'); a('s_mov_b32 s52, 0'); a('s_mov_b32 s53, 0'); a('s_mov_b32 s56, 0')
        a('s_load_dword s88, s[40:41], s8 glc')
        a('s_load_dword s89, s[40:41], s9 glc')
        a('s_waitcnt lgkmcnt(0)')
        a('s_memtime s[12:13]')
        a('s_waitcnt lgkmcnt(0)')
        a(f's_mov_b32 s57, {meas}')
        a('L_ml:')
        a('s_load_dword s88, s[40:41], s8 glc')
        a('s_waitcnt lgkmcnt(0)')
        a('s_memtime s[14:15]')
        a('s_waitcnt lgkmcnt(0)')
        a('s_load_dword s89, s[40:41], s9 glc')
        a('s_sub_u32 s46, s14, s12')
        a('s_waitcnt lgkmcnt(0)')
        a('s_memtime s[12:13]')
        a('s_waitcnt lgkmcnt(0)')
        a('s_sub_u32 s47, s12, s14')
        a('s_min_u32 s50, s50, s46'); a('s_min_u32 s51, s51, s47')
        a('s_add_u32 s52, s52, s46'); a('s_add_u32 s53, s53, s47')
        a('s_cmp_lt_u32 s47, s46'); a('s_addc_u32 s56, s56, 0')
        a('s_sub_u32 s57, s57, 1')
        a('s_cmp_lg_u32 s57, 0')
        a('s_cbranch_scc1 L_ml')
        for kk, r in zip((2, 3, 4, 5, 8), (50, 51, 52, 53, 56)):
            a(f's_add_u32 s{60 + 2 * kk}, s60, s{r}')
            a(f's_addc_u32 s{61 + 2 * kk}, s61, 0')
        stamp(12)
        a('L_nomeas:')

    a('L_service:')
    a('v_and_b32 v6, 7, v1')
    a('v_lshrrev_b32 v5, 3, v1')
    a('v_and_b32 v7, 2, v5')
    a('v_xor_b32 v7, v7, v6')
    a('v_lshlrev_b32 v5, 10, v5')
    a('v_lshl_add_u32 v5, v7, 4, v5')
    a('s_lshl_b32 s8, s3, 17')
    a('s_lshl_b32 s9, s5, 15')
    a('s_add_u32 s8, s8, s9')
    a('s_lshl_b32 s9, s4, 7')
    a('s_add_u32 s8, s8, s9')
    a('v_add_u32 v8, s8, v5')
    a('v_xor_b32 v9, 0x2040, v8')
    a('v_add_u32 v10, 0x4000, v8')
    a('v_add_u32 v11, 0x4000, v9')
    a('s_lshl_b32 s8, s5, 12')
    a('v_lshl_add_u32 v12, v1, 4, s8')
    a('v_lshrrev_b32 v13, 2, v2')
    a('v_lshl_add_u32 v13, v3, 3, v13')
    a('v_lshlrev_b32 v13, 7, v13')
    a('v_and_b32 v14, 3, v2')
    a('v_lshl_add_u32 v13, v14, 3, v13')
    a('v_bfe_u32 v14, v1, 3, 2')
    a('v_xor_b32 v14, s5, v14')
    a('v_lshl_add_u32 v13, v14, 5, v13')
    a('v_lshlrev_b32 v14, 3, v6')
    a('v_lshlrev_b32 v15, 3, v1')
    a('s_lshl_b32 s8, s10, 10')
    a(f's_add_u32 s8, s8, {OS}')
    a('v_add_u32 v16, s8, v15')
    a(f'v_mul_u32_u24 v61, {OBS}, v6')
    a(f'v_mov_b32 v60, {L_CN3}')
    a('v_mov_b32 v17, 1')
    a('v_and_b32 v63, 8, v1')
    a('v_lshl_add_u32 v62, v63, 4, v61')
    a('v_lshl_add_u32 v62, v3, 4, v62')
    a('s_lshl_b32 s8, s4, 5')
    a('s_add_u32 s8, s8, s3')
    a('s_lshl_b32 s8, s8, 9')
    a('s_lshl_b32 s9, s5, 7')
    a('s_add_u32 s8, s8, s9')
    a(f's_add_u32 s8, s8, {SS}')
    if slay:
        a('s_lshl2_add_u32 s8, s4, s5')
        a(f's_mul_i32 s8, s8, {4096 * slay}')
        a('s_lshl_b32 s9, s3, 7')
        a('s_add_u32 s8, s8, s9')
        a(f's_add_u32 s8, s8, {S2}')
    a('v_lshl_add_u32 v19, v2, 3, s8')
    a('s_mov_b32 s54, 0')
    a('s_mov_b32 s55, -1')
    a('v_mov_b32 v21, s6')
    a('v_mov_b32 v23, s6')
    a('v_mov_b32 v25, s6')
    a('v_mov_b32 v27, s6')
    if pw & 4:
        ldswait('L_cw0', L_FLAG, 1, 30, 4)
    if pw & 1:
        a('global_load_dword v110, v19, s[40:41]')
    if pw & 2:
        a('global_load_dwordx2 v[112:113], v16, s[40:41]')
    if spw:
        if spw > 0:
            ldswait('L_cw5', L_CN4, spw, 30, 4)
        else:
            ldswait('L_cw5', L_CNT, -spw, 30, 4)
        a('s_lshl_b32 s8, s3, 17')
        a('s_lshl_b32 s9, s5, 15')
        a('s_add_u32 s8, s8, s9')
        a('s_lshl_b32 s9, s4, 7')
        a('s_add_u32 s8, s8, s9')
        a('s_add_u32 s12, s24, s8')
        a('s_addc_u32 s13, s25, 0')
        for i in range(32):
            a(f's_load_dword s{88 + (i & 7)}, s[12:13], {1024 * i}')
    if numa:
        a(f'v_mov_b32 v84, {CH}')
        ldswait('L_cw1', L_CNT, 1, 30, 4)
        a(f'global_load_dwordx2 v[86:87], v84, s[40:41] {hl}')
    if wsp:
        ldswait('L_cw2', L_CNT, wsp[0], 30, 2)
        a('s_lshl_b32 s8, s5, 12')
        for i in range(wsp[1]):
            a(f's_add_u32 m0, s8, {L_W + 1024 * i}')
            a('s_nop 0')
            a(f'global_load_lds_dwordx4 v{8 + i}, s[24:25] {pol}')
    if 'l' not in knock:
        ldswait('L_cw', L_CNT, 8, 30, slw)
    if dma:
        a('s_lshl_b32 s8, s5, 12')
        for i in range(wsp[1] if wsp else 0, 4 if 'o' not in knock else 0):
            a(f's_add_u32 m0, s8, {L_W + 1024 * i}')
            a('s_nop 0')
            a(f'global_load_lds_dwordx4 v{8 + i}, s[24:25] {pol}')
    else:
        for i in range(4):
            a(f'global_load_dwordx4 v[{64 + 4 * i}:{67 + 4 * i}], v{8 + i}, s[24:25] {pol}')
    stamp(6)
    if numa:
        a('s_waitcnt vmcnt(4)')
        a('s_branch L_ch1')
        a('L_ch:')
        a(f'global_load_dwordx2 v[86:87], v84, s[40:41] {hl}')
        a('s_waitcnt vmcnt(0)')
        a('L_ch1:')
        a('v_cmp_ne_u32 vcc, s6, v87')
        poll_tail('L_ch', sleep=1)
        a('v_and_b32 v86, 0x2000, v86')
        a('v_add_u32 v19, v19, v86')
    a('s_cmp_lg_u32 s5, 0')
    a('s_cbranch_scc1 L_h123')
    a(f'ds_read_b64 v[28:29], v14 offset:{L_ML}')
    a('s_waitcnt lgkmcnt(0)')
    a(f'v_max_f32_dpp v20, v28, v28 row_ror:4 {DPPM}')
    a(f'v_max_f32_dpp v20, v20, v20 row_ror:2 {DPPM}')
    a(f'v_max_f32_dpp v20, v20, v20 row_ror:1 {DPPM}')
    a('v_sub_f32 v28, v28, v20')
    a('v_exp_f32 v28, v28')
    a('v_mul_f32 v22, v28, v29')
    for r in (4, 2, 1):
        a(f'v_add_f32_dpp v22, v22, v22 row_ror:{r} {DPPM}')
    if selfb:
        a(f's_mul_i32 s8, s4, {OBS}')
        a(f's_add_u32 s8, s8, {L_OB}')
        a('v_lshl_add_u32 v18, v1, 2, s8')
    a('s_mov_b64 exec, 1')
    if selfb:
        a('ds_write2_b32 v18, v20, v22 offset0:64 offset1:65')
    a('s_cmp_lg_u32 s48, 0')
    a('s_cbranch_scc1 L_mlfar')
    a('global_store_dwordx4 v16, v[20:23], s[40:41] offset:512')
    a('s_branch L_mld')
    a('L_mlfar:')
    a(f'global_store_dwordx4 v16, v[20:23], s[40:41] offset:512 {hs}')
    a('L_mld:')
    a('s_mov_b64 exec, -1')
    a('s_barrier')
    stamp(7)
    for n in range(0, 8, 2):
        a(f'ds_read2st64_b64 v[{32 + 2 * n}:{35 + 2 * n}], v15 offset0:{n} offset1:{n + 1}')
    for n in range(8):
        if n % 2 == 0:
            a(f's_waitcnt lgkmcnt({3 - n // 2})')
        op = 'v_mul_f32_dpp' if n < 2 else 'v_fmac_f32_dpp'
        a(f'{op} v{(24, 48)[n & 1]}, v28, v{32 + 2 * n} row_newbcast:{n} {DPPM}')
        a(f'{op} v{(30, 49)[n & 1]}, v28, v{33 + 2 * n} row_newbcast:{n} {DPPM}')
    a('v_add_f32 v24, v24, v48')
    a('v_add_f32 v30, v30, v49')
    a('v_cvt_pk_bf16_f32 v24, v24, v30')
    a('s_cbranch_scc1 L_far')
    a('global_store_dwordx2 v16, v[24:25], s[40:41]')
    a('L_pubd:')
    stamp(8)
    if b2:
        a('s_barrier')
    if selfb:
        a('ds_write_b32 v18, v24')
        a('s_waitcnt lgkmcnt(0)')
    a('s_waitcnt vmcnt(2)')
    a('s_branch L_wo')
    a('L_far:')
    a(f'global_store_dwordx2 v16, v[24:25], s[40:41] {hs}')
    a('s_branch L_pubd')
    a('L_h123:')
    a('s_cmp_lg_u32 s5, 1')
    if uat == 'cnt':
        a('s_cbranch_scc1 L_h23b')
        a(UST)
        a('L_h23b:')
    a('s_barrier')
    stamp(7)
    if b2:
        a('s_barrier')
    if uat == 'B1':
        a('s_cbranch_scc1 L_h23b')
        a(UST)
        a('s_waitcnt vmcnt(1)')
        a('s_branch L_wo')
        a('L_h23b:')
    a('s_waitcnt vmcnt(0)')
    a('L_wo:')
    if 't' in knock:
        a('s_branch L_end')
    if not dma:
        for i in range(4):
            a(f'ds_write_b128 v12, v[{64 + 4 * i}:{67 + 4 * i}] offset:{L_W + 1024 * i}')
        a('s_waitcnt lgkmcnt(0)')

    def trreads(ss):
        for s in ss:
            for hh in range(2):
                r = 64 + 4 * s + 2 * hh
                a(f'ds_read_b64_tr_b16 v[{r}:{r + 1}], v13 offset:{L_W + 4096 * s + 512 * hh}')
    if not merge:
        a('s_mov_b64 exec, 1')
        a('ds_add_u32 v60, v17')
        a('s_mov_b64 exec, -1')
        a('L_cw3:')
        a('ds_read_b32 v31, v60')
        a('s_waitcnt lgkmcnt(0)')
        a('v_cmp_gt_u32 vcc, 4, v31')
        poll_tail('L_cw3', sleep=0)
        trreads(range(4))
    stamp(9)
    a('s_barrier')
    stamp(10)
    a(f'ds_read_b64 v[28:29], v61 offset:{L_OB + 256}')
    a(f'ds_read_b128 v[32:35], v62 offset:{L_OB}')
    if merge:
        trreads((0, 2))
    a(f'ds_read_b128 v[40:43], v62 offset:{L_OB + 64}')
    if merge:
        trreads((1, 3))
        a('s_waitcnt lgkmcnt(10)')
        a(f'v_max_f32_dpp v48, v28, v28 row_ror:4 {DPPM}')
        a(f'v_max_f32_dpp v48, v48, v48 row_ror:2 {DPPM}')
        a(f'v_max_f32_dpp v48, v48, v48 row_ror:1 {DPPM}')
        a('v_sub_f32 v28, v28, v48')
        a('v_exp_f32 v28, v28')
        a('s_waitcnt lgkmcnt(7)')
        a(f'{MF} v[52:55], v[32:35], v[64:67], 0')
        a('v_mul_f32 v30, v28, v29')
        a('s_waitcnt lgkmcnt(5)')
        a(f'{MF} v[56:59], v[32:35], v[72:75], 0')
        a(f'v_add_f32_dpp v30, v30, v30 row_ror:4 {DPPM}')
        a('s_waitcnt lgkmcnt(2)')
        a(f'{MF} v[52:55], v[40:43], v[68:71], v[52:55]')
        a(f'v_add_f32_dpp v30, v30, v30 row_ror:2 {DPPM}')
        a('s_waitcnt lgkmcnt(0)')
        a(f'{MF} v[56:59], v[40:43], v[76:79], v[56:59]')
        a(f'v_add_f32_dpp v30, v30, v30 row_ror:1 {DPPM}')
    else:
        a('s_waitcnt lgkmcnt(1)')
        a(f'v_max_f32_dpp v48, v28, v28 row_ror:4 {DPPM}')
        a(f'{MF} v[52:55], v[32:35], v[64:67], 0')
        a(f'{MF} v[56:59], v[32:35], v[72:75], 0')
        a('s_waitcnt lgkmcnt(0)')
        a(f'v_max_f32_dpp v48, v48, v48 row_ror:2 {DPPM}')
        a(f'{MF} v[52:55], v[40:43], v[68:71], v[52:55]')
        a(f'{MF} v[56:59], v[40:43], v[76:79], v[56:59]')
        a(f'v_max_f32_dpp v48, v48, v48 row_ror:1 {DPPM}')
        a('v_sub_f32 v28, v28, v48')
        a('v_exp_f32 v28, v28')
        a('v_mul_f32 v30, v28, v29')
        for r in (4, 2, 1):
            a(f'v_add_f32_dpp v30, v30, v30 row_ror:{r} {DPPM}')
    a('v_mov_b32_dpp v28, v28 row_ror:4 row_mask:0xa bank_mask:0xf')
    a('v_rcp_f32 v30, v30')
    for r in range(4):
        a(f'v_cndmask_b32 v{52 + r}, v{52 + r}, v{56 + r}, s[54:55]')
    a(f'v_mul_f32_dpp v26, v28, v52 row_newbcast:0 {DPPM}')
    a(f'v_mul_f32_dpp v48, v28, v53 row_newbcast:1 {DPPM}')
    a(f'v_fmac_f32_dpp v26, v28, v54 row_newbcast:2 {DPPM}')
    a(f'v_fmac_f32_dpp v48, v28, v55 row_newbcast:3 {DPPM}')
    a('v_add_f32 v26, v26, v48')
    a('v_mul_f32 v26, v26, v30')
    swapop('v_add_f32', 26, 48, 16)
    swapop('v_add_f32', 26, 48, 32)
    a('s_mov_b64 exec, 0xffff')
    if 'S' not in knock:
        a(f'global_store_dwordx2 v19, v[26:27], s[40:41] {hsc}')
    stamp(11)
    if b4 == 1:
        a('s_barrier')
    if wb:
        a('s_xor_b32 s8, s5, 3')
        if wb == 1:
            a('s_or_b32 s8, s8, s4')
        elif wb == 2:
            a('s_and_b32 s9, s10, 31')
            a('s_or_b32 s8, s8, s9')
        a('s_cbranch_scc1 L_end')
        a('buffer_wbl2 sc1')

    a('L_end:')
    if stamps and not amp:
        a('s_cmp_ge_u32 s2, 256')
        a('s_cbranch_scc1 L_end3')
        stamp(13)
        a('s_waitcnt lgkmcnt(0)')
        a('s_sleep 100')
        a('s_mov_b64 exec, 1')
        a(f's_mul_i32 s8, s10, {NW}')
        a('s_add_u32 s8, s8, s5')
        a(f's_mul_i32 s8, s8, {8 * NST}')
        a(f's_add_u32 s8, s8, {STAMP}')
        a('s_waitcnt vmcnt(0)')
        a('v_mov_b32 v1, s8')
        for k in range(NST):
            a(f'v_mov_b32 v2, s{60 + 2 * k}'); a(f'v_mov_b32 v3, s{61 + 2 * k}')
            a(f'global_store_dwordx2 v1, v[2:3], s[40:41] offset:{8 * k}')
        a('L_end3:')
    a('s_endpgm')

    out = HEADER
    out += f'; @launch grid=(256,1,1) block=({NW * 64},1,1) lds={LDS_BYTES}\n'
    out += DOC
    out += '.amdgcn_target "amdgcn-amd-amdhsa--gfx950"\n.text\n'
    out += f'.globl {NAME}_kernel\n.p2align 8\n.type {NAME}_kernel,@function\n{NAME}_kernel:\n'
    if stamps:
        out += ''.join(f'    s_mov_b64 s[{60 + 2 * k}:{61 + 2 * k}], 0\n' for k in range(NST))
    out += a.text()
    out += f'''.section .rodata,"a"
.p2align 6
.amdhsa_kernel {NAME}_kernel
  .amdhsa_next_free_vgpr 168
  .amdhsa_next_free_sgpr 96
  .amdhsa_accum_offset 168
  .amdhsa_group_segment_fixed_size 0
  .amdhsa_kernarg_size 104
  .amdhsa_user_sgpr_count 2
  .amdhsa_user_sgpr_kernarg_segment_ptr 1
  .amdhsa_system_sgpr_workgroup_id_x 1
  .amdhsa_float_denorm_mode_32 3
.end_amdhsa_kernel
'''
    return out


if __name__ == '__main__':
    V = eval(sys.argv[1])
    for k, v in V.items():
        open(f'exp/{k}.s', 'w').write(gen(**v))
```
